```python
import torch

def _softmax(x, axis=-1):
    return torch.softmax(x, dim=axis)
def _gelu(x):
    return torch.nn.functional.gelu(x, approximate="tanh")
def _silu(x):
    return torch.nn.functional.silu(x)
def _sigmoid(x):
    return torch.sigmoid(x)
def _layernorm(x, axis=-1, eps=1e-5):
    m = x.mean(dim=axis, keepdim=True)
    v = x.var(dim=axis, keepdim=True, unbiased=False)
    return (x - m) / torch.sqrt(v + eps)
def _scatter_add(tgt, idx, src, axis=0):
    return tgt.clone().index_add_(axis, idx, src)
def _segment_sum(src, seg, n):
    out = torch.zeros((n,) + src.shape[1:], dtype=src.dtype)
    return out.index_add_(0, seg, src)
def _pad(x, pw):
    flat = tuple(v for pair in reversed(pw) for v in pair)
    return torch.nn.functional.pad(x, flat)

kernel_name = 'gated_mix__ssm_conv_s5__mixer_channel_mlp__prompt'

def setup_inputs():

    _w = (lambda a: (lambda t: t.to(torch.bfloat16) if t.is_floating_point() else t)(torch.as_tensor(a)))
    def _A_setup():
        B, S, D = 1, 2048, 448
        P = D
        Lambda_re = -0.5 * (lambda _x: torch.exp(torch.as_tensor(_x)))((lambda *s: torch.randn(*s, dtype=torch.bfloat16) * 0.4)(P))
        Lambda_im = (lambda *s: torch.randn(*s, dtype=torch.bfloat16) * 0.8)(P) * 1.0
        B_re = (lambda *s: torch.randn(*s, dtype=torch.bfloat16) * 0.8)(P, D) * (D ** -0.5)
        B_im = (lambda *s: torch.randn(*s, dtype=torch.bfloat16) * 0.8)(P, D) * (D ** -0.5)
        C_re = (lambda *s: torch.randn(*s, dtype=torch.bfloat16) * 0.8)(D, P) * (P ** -0.5)
        C_im = (lambda *s: torch.randn(*s, dtype=torch.bfloat16) * 0.8)(D, P) * (P ** -0.5)
        log_dt = (lambda *s: torch.randn(*s, dtype=torch.bfloat16) * 0.4)(P) * 0.3 - 2.0
        Dskip = (lambda *s: torch.randn(*s, dtype=torch.bfloat16) * 0.1)(D)
        return {
            "x": _w((lambda *s: torch.randn(*s, dtype=torch.bfloat16) * 0.05)(B, S, D)),
            "Lambda_re": _w(Lambda_re),
            "Lambda_im": _w(Lambda_im),
            "B_re": _w(B_re),
            "B_im": _w(B_im),
            "C_re": _w(C_re),
            "C_im": _w(C_im),
            "log_dt": _w(log_dt),
            "Dskip": _w(Dskip),
        }
    _A_in = _A_setup()

    def _B_setup():
        B, S, D, F = 1, 2048, 448, 1792
        return {
            "x": _w((lambda *s: torch.randn(*s, dtype=torch.bfloat16) * 0.05)(B, S, D)),
            "w1": _w((lambda *s: torch.randn(*s, dtype=torch.bfloat16) * 0.8)(D, F) * (D ** -0.5)),
            "b1": _w((lambda *s: torch.randn(*s, dtype=torch.bfloat16) * 0.4)(F)),
            "w2": _w((lambda *s: torch.randn(*s, dtype=torch.bfloat16) * 0.05)(F, D) * (F ** -0.5)),
            "b2": _w((lambda *s: torch.randn(*s, dtype=torch.bfloat16) * 0.05)(D)),
        }
    _B_in = _B_setup()

    return {
        "A_x": _A_in["x"],
        "A_Lambda_re": _A_in["Lambda_re"],
        "A_Lambda_im": _A_in["Lambda_im"],
        "A_B_re": _A_in["B_re"],
        "A_B_im": _A_in["B_im"],
        "A_C_re": _A_in["C_re"],
        "A_C_im": _A_in["C_im"],
        "A_log_dt": _A_in["log_dt"],
        "A_Dskip": _A_in["Dskip"],
        "B_x": _B_in["x"],
        "B_w1": _B_in["w1"],
        "B_b1": _B_in["b1"],
        "B_w2": _B_in["w2"],
        "B_b2": _B_in["b2"],
        "gate_w": _w((lambda *s: torch.randn(*s, dtype=torch.bfloat16) * 0.05)(448) * 16.0),
    }

def reference(A_x, A_Lambda_re, A_Lambda_im, A_B_re, A_B_im, A_C_re, A_C_im, A_log_dt, A_Dskip, B_x, B_w1, B_b1, B_w2, B_b2, gate_w):
    def _A_ref(x, Lambda_re, Lambda_im, B_re, B_im, C_re, C_im, log_dt, Dskip):
        Bsz, L, H = x.shape
        Lam = Lambda_re + 1j * Lambda_im
        Bmat = B_re + 1j * B_im
        Cmat = C_re + 1j * C_im
        dt = torch.exp(log_dt)
        Lam_bar = torch.exp(dt * Lam)
        B_bar = ((Lam_bar - 1.0) / Lam)[:, None] * Bmat
        Bu = torch.einsum("bld,pd->blp", x + 0j, B_bar)
        h = torch.zeros_like(Bu[:, 0, :])
        hs = []
        for t in range(L):
            h = Lam_bar[None, :] * h + Bu[:, t, :]
            hs.append(h)
        hseq = torch.stack(hs, 1)
        y = 2.0 * torch.einsum("blp,dp->bld", hseq, Cmat).real + x * Dskip[None, None, :]
        return y

    def _B_ref(x, w1, b1, w2, b2):
        y = _layernorm(x, axis=-1)
        h = _gelu(torch.einsum("bsd,df->bsf", y, w1) + b1)
        return torch.einsum("bsf,fd->bsd", h, w2) + b2

    x = A_x
    g = _sigmoid((x * gate_w).sum(-1, keepdims=True))
    a = _A_ref(x, A_Lambda_re, A_Lambda_im, A_B_re, A_B_im, A_C_re, A_C_im, A_log_dt, A_Dskip)
    b = _B_ref(x, B_w1, B_b1, B_w2, B_b2)
    return g * a + (1 - g) * b
```

```python
NAME = "gated_mix__ssm_conv_s5__mixer_channel_mlp__prompt"

KA = dict(x=0, lre=8, lim=16, bre=24, bim=32, cre=40, cim=48, ldt=56, dskip=64,
          bx=72, w1=80, b1=88, w2=96, b2=104, gw=112, out=120, dbg=128, ws=136)
SZ = dict(x=2048*448*2, lre=896, lim=896, bre=448*448*2, bim=448*448*2, cre=448*448*2,
          cim=448*448*2, ldt=896, dskip=896, bx=2048*448*2, w1=448*1792*2, b1=1792*2,
          w2=448*1792*2, b2=896, gw=896, out=2048*448*4, dbg=256, ws=268435456)

HEADER = open('cdna_kernels/' + NAME + '.s.ref').read().split('; Override launch')[0]


class Asm:
    def __init__(self):
        self.lines = []
        self.uid = 0

    def __call__(self, s=''):
        for l in s.split('\n'):
            self.lines.append(l)

    def label(self, base='L'):
        self.uid += 1
        return '%s_%d' % (base, self.uid)

    def text(self):
        return '\n'.join(self.lines) + '\n'


def kernel_begin(a, name):
    a('.text')
    a('.globl %s' % name)
    a('.p2align 8')
    a('.type %s,@function' % name)
    a('%s:' % name)


def kernel_desc(a, name, vgpr=256, sgpr=102, accum=None, extra=''):
    if accum is None:
        accum = min(256, (vgpr + 3) // 4 * 4)
    a('.section .rodata,"a"')
    a('.p2align 6')
    a('.amdhsa_kernel %s' % name)
    a('  .amdhsa_next_free_vgpr %d' % vgpr)
    a('  .amdhsa_next_free_sgpr %d' % sgpr)
    a('  .amdhsa_accum_offset %d' % accum)
    a('  .amdhsa_group_segment_fixed_size 0')
    a('  .amdhsa_kernarg_size 144')
    a('  .amdhsa_user_sgpr_count 2')
    a('  .amdhsa_user_sgpr_kernarg_segment_ptr 1')
    a('  .amdhsa_system_sgpr_workgroup_id_x 1')
    if extra:
        a(extra)
    a('.end_amdhsa_kernel')


def srd(a, dst, name, tmp=None, size=None):
    a('s_load_dwordx2 s[%d:%d], s[0:1], %d' % (dst, dst + 1, KA[name]))


def srd_fin(a, dst, name, size=None):
    a('s_mov_b32 s%d, %d' % (dst + 2, SZ[name] if size is None else size))
    a('s_mov_b32 s%d, 0x20000' % (dst + 3))
```

```python
from asmlib import *
import sys
a = Asm()
WS_BURE = 0
WS_BUIM = 2048*448*4
WS_STAT = 2*2048*448*4
WS_H = WS_STAT + 3*2048*4
launch = [('k1_kernel', 8, 256), ('k2_kernel', 2048, 448), ('k3_kernel', 1, 448),
          ('k4_kernel', 2048*7, 256), ('k5_kernel', 2048, 448)]
nempty = int(sys.argv[1]) if len(sys.argv) > 1 else 0
launch += [('k0_kernel', 256, 256)] * nempty
a(HEADER.rstrip())
for k, g, b in launch:
    a('; @launch kernel=%s grid=(%d,1,1) block=(%d,1,1) lds=0' % (k, g, b))
a('.amdgcn_target "amdgcn-amd-amdhsa--gfx950"')

def rne_bf16(v, tmp):
    a('v_cvt_pk_bf16_f32 %s, %s, %s' % (v, v, v))
    a('v_lshlrev_b32 %s, 16, %s' % (v, v))

kernel_begin(a, 'k0_kernel')
a('s_endpgm')

kernel_begin(a, 'k1_kernel')
a('s_cmp_ge_u32 s2, 8\ns_cbranch_scc1 k1_end')
srd(a, 4, 'x'); srd(a, 8, 'gw'); srd(a, 12, 'ws')
a('s_waitcnt lgkmcnt(0)')
srd_fin(a, 4, 'x'); srd_fin(a, 8, 'gw'); srd_fin(a, 12, 'ws')
a('''s_lshl_b32 s3, s2, 8
v_add_u32 v1, s3, v0          ; token
v_mul_u32_u24 v2, 896, v1     ; row byte offset
v_mov_b32 v10, 0
v_mov_b32 v11, 0
v_mov_b32 v3, 0
s_mov_b32 s16, 0
k1_l1:
buffer_load_dword v4, v2, s[4:7], s16 offen
buffer_load_dword v5, v3, s[8:11], s16 offen
s_waitcnt vmcnt(0)
v_lshlrev_b32 v6, 16, v4
v_and_b32 v7, 0xffff0000, v4
v_lshlrev_b32 v8, 16, v5
v_and_b32 v9, 0xffff0000, v5
v_add_f32 v10, v10, v6
v_add_f32 v10, v10, v7
v_fmac_f32 v11, v6, v8
v_fmac_f32 v11, v7, v9
s_add_u32 s16, s16, 4
s_cmp_lt_u32 s16, 896
s_cbranch_scc1 k1_l1
v_mul_f32 v10, 0x3b124925, v10   ; 1/448
v_mov_b32 v12, 0
s_mov_b32 s16, 0
k1_l2:
buffer_load_dword v4, v2, s[4:7], s16 offen
s_waitcnt vmcnt(0)
v_lshlrev_b32 v6, 16, v4
v_and_b32 v7, 0xffff0000, v4
v_sub_f32 v6, v6, v10
v_sub_f32 v7, v7, v10
v_fmac_f32 v12, v6, v6
v_fmac_f32 v12, v7, v7
s_add_u32 s16, s16, 4
s_cmp_lt_u32 s16, 896
s_cbranch_scc1 k1_l2
v_mul_f32 v12, 0x3b124925, v12
v_add_f32 v12, 0x3727c5ac, v12   ; 1e-5
v_rsq_f32 v12, v12
v_mul_f32 v11, 0xbfb8aa3b, v11   ; -log2e
v_exp_f32 v11, v11
s_nop 0
v_add_f32 v11, 1.0, v11
v_rcp_f32 v11, v11
v_lshlrev_b32 v1, 2, v1
v_add_u32 v1, %d, v1
buffer_store_dword v10, v1, s[12:15], 0 offen
v_add_u32 v1, 8192, v1
buffer_store_dword v12, v1, s[12:15], 0 offen
v_add_u32 v1, 8192, v1
buffer_store_dword v11, v1, s[12:15], 0 offen
s_waitcnt vmcnt(0)
k1_end:
s_endpgm''' % WS_STAT)

def lam_setup(vp2, base):
    b = base
    a('''buffer_load_ushort v%d, v%d, s[20:23], 0 offen
buffer_load_ushort v%d, v%d, s[24:27], 0 offen
buffer_load_ushort v%d, v%d, s[28:31], 0 offen
s_waitcnt vmcnt(0)''' % (b+4, vp2, b+5, vp2, b+6, vp2))
    a('''v_lshlrev_b32 v{4}, 16, v{4}
v_lshlrev_b32 v{5}, 16, v{5}
v_lshlrev_b32 v{6}, 16, v{6}
v_mul_f32 v{6}, 0x3fb8aa3b, v{6}
v_exp_f32 v{6}, v{6}
s_nop 0'''.format(*range(b, b+10)))
    rne_bf16('v%d' % (b+6), None)
    a('''v_mul_f32 v{7}, v{6}, v{4}      ; dt*re
v_mul_f32 v{8}, v{6}, v{5}      ; dt*im
v_mul_f32 v{7}, 0x3fb8aa3b, v{7}
v_exp_f32 v{7}, v{7}
v_mul_f32 v{8}, 0.15915494309189532, v{8}
v_fract_f32 v{8}, v{8}
v_cos_f32 v{0}, v{8}
v_sin_f32 v{1}, v{8}
s_nop 0
v_mul_f32 v{0}, v{0}, v{7}
v_mul_f32 v{1}, v{1}, v{7}
v_add_f32 v{7}, -1.0, v{0}      ; nr
v_mul_f32 v{8}, v{4}, v{4}
v_fmac_f32 v{8}, v{5}, v{5}
v_rcp_f32 v{8}, v{8}
v_mul_f32 v{2}, v{7}, v{4}
v_fmac_f32 v{2}, v{1}, v{5}     ; nr*re + ni*im
v_mul_f32 v{3}, v{1}, v{4}
v_fma_f32 v{3}, -v{7}, v{5}, v{3}  ; ni*re - nr*im
v_mul_f32 v{2}, v{2}, v{8}
v_mul_f32 v{3}, v{3}, v{8}'''.format(*range(b, b+10)))

kernel_begin(a, 'k2_kernel')
a('s_cmp_ge_u32 s2, 2048\ns_cbranch_scc1 k2_end')
srd(a, 4, 'x'); srd(a, 8, 'bre'); srd(a, 12, 'bim'); srd(a, 16, 'ws'); srd(a, 20, 'lre'); srd(a, 24, 'lim'); srd(a, 28, 'ldt')
a('s_waitcnt lgkmcnt(0)')
for r, n in ((4, 'x'), (8, 'bre'), (12, 'bim'), (16, 'ws'), (20, 'lre'), (24, 'lim'), (28, 'ldt')):
    srd_fin(a, r, n)
a('v_lshlrev_b32 v1, 1, v0')
lam_setup(1, 20)
a('''s_mul_i32 s3, s2, 896
v_mov_b32 v2, s3
v_mul_u32_u24 v3, 896, v0
v_mov_b32 v10, 0
v_mov_b32 v11, 0
s_mov_b32 s32, 0
k2_l:
buffer_load_dword v4, v2, s[4:7], s32 offen
buffer_load_dword v5, v3, s[8:11], s32 offen
buffer_load_dword v6, v3, s[12:15], s32 offen
s_waitcnt vmcnt(0)
v_lshlrev_b32 v7, 16, v4
v_and_b32 v8, 0xffff0000, v4
v_lshlrev_b32 v12, 16, v5
v_and_b32 v13, 0xffff0000, v5
v_lshlrev_b32 v14, 16, v6
v_and_b32 v15, 0xffff0000, v6
v_fmac_f32 v10, v7, v12
v_fmac_f32 v10, v8, v13
v_fmac_f32 v11, v7, v14
v_fmac_f32 v11, v8, v15
s_add_u32 s32, s32, 4
s_cmp_lt_u32 s32, 896
s_cbranch_scc1 k2_l
v_mul_f32 v12, v22, v10
v_fma_f32 v12, -v23, v11, v12
v_mul_f32 v13, v22, v11
v_fmac_f32 v13, v23, v10
s_mul_i32 s3, s2, 1792
v_lshlrev_b32 v1, 2, v0
v_add_u32 v1, s3, v1
buffer_store_dword v12, v1, s[16:19], 0 offen
v_add_u32 v1, %d, v1
buffer_store_dword v13, v1, s[16:19], 0 offen
s_waitcnt vmcnt(0)
k2_end:
s_endpgm''' % WS_BUIM)

kernel_begin(a, 'k3_kernel')
a('s_cmp_ge_u32 s2, 1\ns_cbranch_scc1 k3_end')
srd(a, 16, 'ws'); srd(a, 20, 'lre'); srd(a, 24, 'lim'); srd(a, 28, 'ldt')
a('s_waitcnt lgkmcnt(0)')
for r, n in ((16, 'ws'), (20, 'lre'), (24, 'lim'), (28, 'ldt')):
    srd_fin(a, r, n)
a('v_lshlrev_b32 v1, 1, v0')
lam_setup(1, 20)
a('''v_lshlrev_b32 v1, 2, v0
v_add_u32 v2, %d, v1
v_mov_b32 v10, 0
v_mov_b32 v11, 0
s_mov_b32 s32, 0
k3_l:
buffer_load_dword v4, v1, s[16:19], s32 offen
buffer_load_dword v5, v2, s[16:19], s32 offen
s_waitcnt vmcnt(0)
v_fmac_f32 v4, v20, v10
v_fma_f32 v4, -v21, v11, v4
v_fmac_f32 v5, v20, v11
v_fmac_f32 v5, v21, v10
v_mov_b32 v10, v4
v_mov_b32 v11, v5
buffer_store_dword v10, v1, s[16:19], s32 offen
buffer_store_dword v11, v2, s[16:19], s32 offen
s_add_u32 s32, s32, 1792
s_cmp_lt_u32 s32, %d
s_cbranch_scc1 k3_l
s_waitcnt vmcnt(0)
k3_end:
s_endpgm''' % (WS_BUIM, 2048*1792))

kernel_begin(a, 'k4_kernel')
a('s_cmp_ge_u32 s2, %d\ns_cbranch_scc1 k4_end' % (2048*7))
srd(a, 4, 'x'); srd(a, 8, 'w1'); srd(a, 12, 'b1'); srd(a, 16, 'ws')
a('s_waitcnt lgkmcnt(0)')
for r, n in ((4, 'x'), (8, 'w1'), (12, 'b1'), (16, 'ws')):
    srd_fin(a, r, n)
a('''s_mov_b32 s20, 613566757
s_mul_hi_u32 s21, s2, s20      ; t = wg/7
s_mul_i32 s22, s21, 7
s_sub_u32 s22, s2, s22
s_lshl_b32 s22, s22, 8
v_add_u32 v1, s22, v0          ; f
v_lshlrev_b32 v2, 1, v1        ; f*2
s_lshl_b32 s23, s21, 2
s_add_u32 s23, s23, %d
v_mov_b32 v3, s23
buffer_load_dword v20, v3, s[16:19], 0 offen
v_add_u32 v3, 8192, v3
buffer_load_dword v21, v3, s[16:19], 0 offen
buffer_load_ushort v10, v2, s[12:15], 0 offen
s_mul_i32 s24, s21, 896
v_mov_b32 v3, s24
s_waitcnt vmcnt(0)
v_lshlrev_b32 v10, 16, v10
s_mov_b32 s32, 0
s_mov_b32 s33, 0
k4_l:
buffer_load_ushort v4, v3, s[4:7], s32 offen
buffer_load_ushort v5, v2, s[8:11], s33 offen
s_waitcnt vmcnt(0)
v_lshlrev_b32 v4, 16, v4
v_lshlrev_b32 v5, 16, v5
v_sub_f32 v4, v4, v20
v_mul_f32 v4, v4, v21
v_fmac_f32 v10, v4, v5
s_add_u32 s32, s32, 2
s_add_u32 s33, s33, 3584
s_cmp_lt_u32 s32, 896
s_cbranch_scc1 k4_l
v_mul_f32 v11, v10, v10
v_mov_b32 v12, 0xc0135761      ; -2*0.7978845608*log2e
v_mul_f32 v13, 0xbdd2d3e8, v11   ; * 0.044715
v_add_f32 v12, v12, v13
v_mul_f32 v12, v12, v10
v_exp_f32 v12, v12
s_nop 0
v_add_f32 v12, 1.0, v12
v_rcp_f32 v12, v12
s_nop 0
v_mul_f32 v12, v12, v10
s_mul_i32 s24, s21, 7168
s_add_u32 s24, s24, %d
v_lshlrev_b32 v1, 2, v1
buffer_store_dword v12, v1, s[16:19], s24 offen
s_waitcnt vmcnt(0)
k4_end:
s_endpgm''' % (WS_STAT, WS_H))

kernel_begin(a, 'k5_kernel')
a('s_cmp_ge_u32 s2, 2048\ns_cbranch_scc1 k5_end')
L = ((4, 'x'), (8, 'w2'), (12, 'b2'), (16, 'ws'), (20, 'cre'), (24, 'cim'), (28, 'dskip'), (36, 'out'))
for r, n in L: srd(a, r, n)
a('s_waitcnt lgkmcnt(0)')
for r, n in L: srd_fin(a, r, n)
a('''v_lshlrev_b32 v2, 1, v0        ; d*2
s_lshl_b32 s40, s2, 2
s_add_u32 s40, s40, %d
v_mov_b32 v3, s40
buffer_load_dword v20, v3, s[16:19], 0 offen     ; g
buffer_load_ushort v10, v2, s[12:15], 0 offen    ; b2
buffer_load_ushort v21, v2, s[28:31], 0 offen    ; dskip
s_mul_i32 s41, s2, 896
buffer_load_ushort v22, v2, s[4:7], s41 offen    ; x
s_mul_i32 s42, s2, 7168
s_add_u32 s42, s42, %d
v_mov_b32 v3, s42
s_waitcnt vmcnt(0)
v_lshlrev_b32 v10, 16, v10
v_lshlrev_b32 v21, 16, v21
v_lshlrev_b32 v22, 16, v22
s_mov_b32 s32, 0
s_mov_b32 s33, 0
k5_l1:
buffer_load_dword v4, v3, s[16:19], s32 offen
buffer_load_ushort v5, v2, s[8:11], s33 offen
s_waitcnt vmcnt(0)
v_lshlrev_b32 v5, 16, v5
v_fmac_f32 v10, v4, v5
s_add_u32 s32, s32, 4
s_add_u32 s33, s33, 896
s_cmp_lt_u32 s32, 7168
s_cbranch_scc1 k5_l1
s_mul_i32 s42, s2, 1792
v_mov_b32 v3, s42
v_add_u32 v6, %d, v3
v_mul_u32_u24 v7, 896, v0
v_mov_b32 v11, 0
s_mov_b32 s32, 0
s_mov_b32 s33, 0
k5_l2:
buffer_load_dword v4, v3, s[16:19], s32 offen
buffer_load_dword v5, v6, s[16:19], s32 offen
buffer_load_ushort v8, v7, s[20:23], s33 offen
buffer_load_ushort v9, v7, s[24:27], s33 offen
s_waitcnt vmcnt(0)
v_lshlrev_b32 v8, 16, v8
v_lshlrev_b32 v9, 16, v9
v_fmac_f32 v11, v4, v8
v_fma_f32 v11, -v5, v9, v11
s_add_u32 s32, s32, 4
s_add_u32 s33, s33, 2
s_cmp_lt_u32 s33, 896
s_cbranch_scc1 k5_l2
v_add_f32 v11, v11, v11
v_fmac_f32 v11, v21, v22
v_sub_f32 v12, 1.0, v20
v_mul_f32 v12, v12, v10
v_fmac_f32 v12, v20, v11
s_mul_i32 s42, s2, 1792
v_lshlrev_b32 v1, 2, v0
buffer_store_dword v12, v1, s[36:39], s42 offen
s_waitcnt vmcnt(0)
k5_end:
s_endpgm''' % (WS_STAT + 16384, WS_H, WS_BUIM))

for k in ('k0_kernel', 'k1_kernel', 'k2_kernel', 'k3_kernel', 'k4_kernel', 'k5_kernel'):
    kernel_desc(a, k, vgpr=64, sgpr=64)
open(sys.argv[2] if len(sys.argv) > 2 else 'naive.s', 'w').write(a.text())
```

```python
import re

def _regs(tok):
    tok = tok.strip()
    tok = re.sub(r'^-|^\||\|$', '', tok)
    m = re.match(r'^abs\((.*)\)$', tok)
    if m: tok = m.group(1)
    m = re.match(r'^([vsa])\[(\d+):(\d+)\]$', tok)
    if m: return [(m.group(1), i) for i in range(int(m.group(2)), int(m.group(3)) + 1)]
    m = re.match(r'^([vsa])(\d+)$', tok)
    if m: return [(m.group(1), int(m.group(2)))]
    if tok == 'vcc': return [('s', 'vcc')]
    if tok in ('vcc_lo', 'vcc_hi'): return [('s', 'vcc')]
    if tok == 'm0': return [('s', 'm0')]
    if tok in ('exec', 'exec_lo', 'exec_hi'): return [('s', 'exec')]
    return []

RESOLVE = [None]
TRANS = ('v_exp_f32', 'v_log_f32', 'v_rcp_f32', 'v_rsq_f32', 'v_sqrt_f32', 'v_sin_f32', 'v_cos_f32')

class I:
    __slots__ = ('t', 'op', 'cls', 'w', 'r', 'dpp', 'tag', 'ab', 'c', 'nm')
    def __init__(s, t, tag=None):
        s.nm = {}
        if RESOLVE[0] is not None and '@' in t: t, s.nm = RESOLVE[0](t)
        s.t = t; s.tag = tag
        body = t.split(';')[0].strip()
        sp = body.split(None, 1)
        s.op = op = sp[0] if sp else ''
        rest = sp[1] if len(sp) > 1 else ''
        ops = [o.strip() for o in rest.split(',')]
        if ops:
            last = ops[-1].split()
            mods = last[1:] if last else []
            ops[-1] = last[0] if last else ''
        else: mods = []
        s.dpp = '_dpp' in op
        s.w = []; s.r = []; s.ab = []; s.c = []
        R = lambda l: [x for o in l for x in _regs(o)]
        if op.endswith(':') or op.startswith('.') or op == '':
            s.cls = 'label'
        elif op.startswith('v_mfma'):
            s.cls = 'mfma'; s.w = R(ops[:1]); s.ab = R(ops[1:3]); s.c = R(ops[3:4]); s.r = s.ab + s.c
        elif op.startswith('v_'):
            s.cls = 'valu'
            if op.startswith('v_permlane') and 'swap' in op:
                s.w = R(ops[:2]); s.r = R(ops[:2])
            else:
                s.w = R(ops[:1]); s.r = R(ops[1:])
                if op.startswith(('v_fmac', 'v_dot2c')): s.r += s.w
                if op.startswith('v_add_co') or op.startswith('v_addc_co'): s.w = R(ops[:2]); s.r = R(ops[2:])
                if op.startswith('v_cndmask') and len(ops) == 3: s.r.append(('s', 'vcc'))
        elif op.startswith('ds_read'):
            s.cls = 'dsr'; s.w = R(ops[:1]); s.r = R(ops[1:])
        elif op.startswith('ds_'):
            s.cls = 'dsw'; s.r = R(ops)
        elif op.startswith(('buffer_load', 'global_load')):
            if 'lds' in mods or '_lds_' in op:
                s.cls = 'dma'; s.r = R(ops) + [('s', 'm0')]
            else:
                s.cls = 'vld'; s.w = R(ops[:1]); s.r = R(ops[1:])
                if 'd16' in op: s.r += s.w
        elif op.startswith(('buffer_store', 'global_store')):
            s.cls = 'vst'; s.r = R(ops)
        elif op.startswith(('s_load', 's_memtime', 's_memrealtime')):
            s.cls = 'smem'; s.w = R(ops[:1]); s.r = R(ops[1:])
        elif op in ('s_waitcnt', 's_barrier', 's_nop', 's_endpgm', 's_setprio', 's_sleep') or op.startswith(('s_cbranch', 's_branch')):
            s.cls = 'ctl'
            if 'vcc' in op: s.r = [('s', 'vcc')]
        elif op.startswith('s_cmp'):
            s.cls = 'salu'; s.r = R(ops)
        elif op.startswith('s_'):
            s.cls = 'salu'; s.w = R(ops[:1]); s.r = R(ops[1:])
            if 'saveexec' in op: s.w.append(('s', 'exec'))
        else:
            raise ValueError('unknown instr: ' + t)

class Stream:
    def __init__(s):
        s.out = []
        s.ds = []
        s.vm = []
        s.nsm = 0
    def raw(s, t):
        s.out.append(I(t))
    def _wait(s, lg=None, vm=None):
        p = []
        if vm is not None:
            vm = min(vm, 63); p.append('vmcnt(%d)' % vm); s.vm = s.vm[len(s.vm) - vm:] if vm else []
        if lg is not None:
            lg = min(lg, 15); p.append('lgkmcnt(%d)' % lg); s.ds = s.ds[len(s.ds) - lg:] if lg else []
        if p:
            s.out.append(I('s_waitcnt ' + ' '.join(p)))
    def _need(s, q, regs):
        k = -1
        for j, o in enumerate(q):
            if any(x in o.w for x in regs): k = j
        return None if k < 0 else len(q) - 1 - k
    def __call__(s, text, tag=None):
        r = None
        for t in text.split('\n'):
            t = t.strip()
            if not t: continue
            i = I(t, tag)
            regs = set(i.r) | set(i.w)
            lg = s._need(s.ds, regs); vm = s._need(s.vm, regs)
            if lg is not None or vm is not None: s._wait(lg, vm)
            if i.cls == 'smem': s.nsm += 1
            s.out.append(i)
            if i.cls in ('dsr', 'dsw'): s.ds.append(i)
            if i.cls in ('dma', 'vld', 'vst'): s.vm.append(i)
            if i.op == 's_waitcnt':
                m = re.search(r'vmcnt\((\d+)\)', t)
                if m:
                    n = int(m.group(1)); s.vm = s.vm[len(s.vm) - n:] if n and n < len(s.vm) else ([] if n == 0 else s.vm)
                m = re.search(r'lgkmcnt\((\d+)\)', t)
                if m:
                    n = int(m.group(1)); s.ds = s.ds[len(s.ds) - n:] if n and n < len(s.ds) else ([] if n == 0 else s.ds)
            r = i
        return r
    def wait_tags(s, vmtag=None, dswrites=False, dstag=None):
        lg = vm = None
        if vmtag is not None:
            k = max([j for j, o in enumerate(s.vm) if vmtag(o.tag)], default=-1)
            if k >= 0: vm = len(s.vm) - 1 - k
        k = -1
        if dswrites: k = max([j for j, o in enumerate(s.ds) if o.cls == 'dsw'], default=-1)
        if dstag is not None: k = max([k] + [j for j, o in enumerate(s.ds) if dstag(o.tag)])
        if k >= 0: lg = len(s.ds) - 1 - k
        s._wait(lg, vm)
    def fork(s):
        n = Stream(); n.ds = list(s.ds); n.vm = list(s.vm); return n

def _states(i):
    if i.cls == 'label': return 0
    if i.op == 's_nop': return int(i.t.split()[1]) + 1
    return 1

def fix_hazards(ins, log=None):
    out = []
    nn = 0
    for i in ins:
        if i.cls in ('label',) or i.op in ('s_nop',):
            out.append(i); continue
        need = 0; dist = 0
        rd = set(i.r); wr = set(i.w)
        isv = i.cls == 'valu'
        for p in reversed(out):
            if dist >= 20: break
            req = 0
            pw = set(p.w)
            if p.cls == 'mfma':
                passes8 = '32x32' in p.op
                big = 12 if passes8 else (8 if '16x16' in p.op else 5)
                if i.cls == 'mfma':
                    if pw & set(i.ab): req = big
                    elif pw & set(i.c) and (p.w != i.c or p.op != i.op): req = big - 2
                    elif pw & wr and not (pw & set(i.c)): req = big
                elif pw & (rd | wr): req = big
                if isv and set(p.c) & wr: req = max(req, 7 if passes8 else 3)
            elif p.cls == 'valu':
                vw = {x for x in pw if x[0] != 's'}; sw = {x for x in pw if x[0] == 's'}
                if i.cls == 'mfma' and vw & rd: req = 2
                if isv:
                    if (i.dpp or i.op.startswith('v_permlane')) and vw & rd: req = max(req, 2)
                    if p.op in TRANS and vw & rd and i.op not in TRANS: req = max(req, 1)
                    if p.op in TRANS and vw & rd: req = max(req, 1)
                    if i.op.startswith(('v_readfirstlane', 'v_readlane')) and vw & rd: req = max(req, 1)
                    if sw & rd: req = max(req, 2)
                    if p.op.startswith('v_dot') and vw & (rd | wr) and p.op != i.op: req = max(req, 3)
                    if p.op.startswith('v_dot') and p.op == i.op and vw & (rd - wr): req = max(req, 3)
                if p.op.startswith('v_dot') and i.cls in ('dsw', 'vst', 'mfma') and vw & rd: req = max(req, 3)
                if p.op in TRANS and i.cls in ('dsw', 'vst', 'dsr', 'vld', 'dma') and vw & rd: req = max(req, 1)
                if i.cls in ('dma', 'vld', 'vst') and sw & rd: req = max(req, 5)
                if i.cls in ('salu', 'ctl') and sw & rd: req = max(req, 1)
            elif p.cls == 'salu':
                if i.cls == 'dma' and ('s', 'm0') in pw: req = 1
            elif p.cls == 'vst':
                if ('x4' in p.op or 'x3' in p.op) and set(p.r) & wr: req = 2
            need = max(need, req - dist)
            dist += _states(p)
        if need > 0:
            out.append(I('s_nop %d' % (need - 1))); nn += need
            if log is not None: log.append((i.t, need))
        out.append(i)
    return out, nn

class Regs:
    def __init__(s):
        s.map = {}
    def add(s, name, base, n=1):
        assert name not in s.map, name
        assert 0 <= base and base + n <= 256, name
        s.map[name] = (base, n)
    def __call__(s, t):
        nm = {}
        def sub(m):
            name = m.group(1); base, n = s.map[name]
            if m.group(2) is None:
                lo, hi = (0, 0) if n == 1 or True else (0, n - 1)
            else:
                lo = int(m.group(2)); hi = int(m.group(3)) if m.group(3) else lo
            assert hi < n, (t, name)
            for r in range(lo, hi + 1): nm[base + r] = name
            return 'v%d' % (base + lo) if lo == hi else 'v[%d:%d]' % (base + lo, base + hi)
        return re.sub(r'@([A-Za-z_][A-Za-z_0-9]*)(?:\.(\d+)(?::(\d+))?)?', sub, t), nm

def check_owner(ins, init=None, what=''):
    own = dict(init or {})
    errs = []
    for k, i in enumerate(ins):
        for (c, r) in i.r:
            if c != 'v': continue
            nm = i.nm.get(r)
            if own.get(r) != nm and not (i.op.startswith('RENAME')):
                errs.append('%s: #%d %s reads v%d as %s but owner is %s' % (what, k, i.t, r, nm, own.get(r)))
        for (c, r) in i.w:
            if c == 'v': own[r] = i.nm.get(r)
    return errs, own

def cost(t):
    c = 0
    for l in t.split('\n'):
        l = l.strip()
        if not l: continue
        op = l.split()[0]
        if op.startswith('v_mfma') or op in TRANS or op.startswith(('buffer_', 'global_')): c += 2
        elif op.startswith('v_dot2'): c += 2
        elif op.startswith(('v_', 'ds_')): c += 1
        else: c += 0.25
    return c
```

```python
from asmlib import *
from emit import *
import emit, sys

RING = 8192; XR = 106496
GW = 0; ONES = 1024; GA = 2048; CSX = 3072; FX = 5120; KX = 6144
WS_FLAG = 4096; WS_CS = 32768; WS_S = 65536; WS_P = 1 << 20; WS_DBG = 32 << 20
TAGC = 0x3C6EF372
DPP = 'row_ror:8 row_mask:0xf bank_mask:0xf'

SX, SBRE, SBIM, SW1, SW2, SCRE, SCIM, SWS = 4, 8, 12, 16, 20, 24, 28, 32
SS, SOUT, SOC = 72, 76, 80
def R4(b): return 's[%d:%d]' % (b, b + 3)
P_ = dict(x=36, lre=38, lim=40, bre=42, bim=44, cre=46, cim=48, ldt=50, dskip=52, bx=54, w1=56, b1=58,
          w2=60, b2=62, gw=64, out=66, dbg=68, ws=70)
def PP(n): return 's[%d:%d]' % (P_[n], P_[n] + 1)
sW, sQ, sTT, sC, sS, sT, sMQ, sA, sB, sTRY, sT0, sT1 = ['s%d' % i for i in range(84, 96)]
HM = 's[96:97]'
sLO, sHI = 's98', 's99'
sXO = 's3'
sO = ['s%d' % i for i in (42, 43, 44, 45, 46, 47)]
sOW = 's48'; sOCr = ['s49', 's54', 's55']; sOCo = 's56'; sP = ['s57', 's60', 's61']
sW1b = 's36'; sBb = 's37'; sDBG = 's100'; sDB2 = 's101'
STAMPS = [38, 40, 50, 64, 66, 68]

ORDER0 = ([('B', g) for g in range(7)] + [('W1', 0, g) for g in range(7)] + [('W1', 1, g) for g in range(7)]
          + [('W2', r, 0, 0) for r in range(3)] + [('C', r, p) for r in range(3) for p in range(2)]
          + [x for r in range(3) for x in (('W2', r, 0, 1), ('W2', r, 1, 0), ('W2', r, 1, 1))]
          + [('OW', 0), ('OW', 1), ('OC',)])

PLAN0 = dict(lam=(1, 6), p1=(8, 9), spub=10, fin=(10, 12), csa_ld=10, csa_ck=12, kxa=14, csb_ld=16, csb_ck=18, kxb=20,
             tu=(11, 14), ga0=(15, 19), ga1=(20, 24), lb_ld=17, lb_ck=(19, 20), p2=(21, 23), gb0=(25, 27), gb1=(28, 30),
             pre=38)


def regs():
    R = Regs(); A = R.add
    A('l', 0)
    A('trA', 1); A('trB', 2); A('hrd', 3); A('hwr', 4)
    A('DT', 5, 2); A('DR', 7, 2)
    A('lbo', 5); A('cso', 6); A('spo', 7); A('lbo2', 8)
    A('la', 9); A('lb', 10); A('l8', 11, 2); A('l16', 13, 2); A('dbg', 15)
    A('X', 16, 112); A('W', 128, 16)
    A('Aa', 144, 16); A('U', 160, 16); A('Ab', 176, 16)
    A('r0', 192, 16); A('r1', 80, 16); A('r2', 208, 16); A('own', 160, 16)
    A('M', 224, 2); A('cc', 226, 2); A('l32', 228, 2); A('l64', 230, 2); A('l128', 232, 2)
    A('c1', 234); A('c3', 235); A('kk', 236); A('g', 237, 4); A('Ea', 241); A('Z', 242)
    A('t', 243, 4); A('sp', 244, 2); A('xo', 247); A('ra', 248, 8)
    A('pt', 144, 16)
    A('xd', 159)
    A('lr', 176, 16)
    A('st', 192, 16)
    A('xa', 208, 4); A('qa', 212); A('gwa', 213); A('sq', 214); A('sta', 215); A('Qf', 216, 4); A('gf', 220, 4)
    A('sw', 216, 2)
    A('Bx', 208, 4); A('Ax', 212, 4); A('b1', 216); A('b1o', 217)
    A('LB', 16, 32); A('G', 48, 16); A('Ha0', 64, 16); A('hre', 16, 16); A('him', 32, 16)
    A('Ha1', 144, 16); A('Hb0', 96, 16); A('Hb1', 112, 16)
    A('O0', 16, 16); A('O1', 32, 16); A('O2', 48, 16)
    A('hr', 228, 2); A('so', 230); A('Dv', 231); A('b2', 232); A('K', 233)
    A('xv', 64, 8); A('Gt', 72, 8); A('Pp', 80, 24); A('Rr', 104, 8); A('oo', 112); A('fo', 113); A('fv', 114); A('ex', 115)
    A('hl', 16, 28); A('ha', 48, 8); A('ho', 56, 8); A('hp', 64, 16)
    return R


class Plan:
    def __init__(s):
        s.f = {}
        s.pub = {}
    def put(s, roles, p, gap, items):
        for r in roles:
            s.f.setdefault((r, p, gap), []).append(list(items))
    def spread(s, roles, p0, p1, items, g0=0, g1=3):
        gaps = [(p, g) for p in range(p0, p1 + 1) for g in range(4)
                if not (p == p0 and g < g0) and not (p == p1 and g > g1)]
        c = [cost(it[0] if isinstance(it, tuple) else it) for it in items]
        tot = sum(c); acc = 0; per = [[] for _ in gaps]
        for it, ci in zip(items, c):
            k = min(len(gaps) - 1, int((acc + ci / 2) / tot * len(gaps)))
            per[k].append(it); acc += ci
        for (p, g), l in zip(gaps, per):
            if l: s.put(roles, p, g, l)
    def publish(s, roles, p, tag):
        for r in roles: s.pub.setdefault((r, p), set()).add(tag)
    def get(s, role, p, gap):
        qs = [list(q) for q in s.f.get((role, p, gap), [])]
        out = []
        while any(qs):
            for q in qs:
                if q: out.append(q.pop(0))
        return out


def cmul(dst, a, b, z, add, neg=False):
    return ['v_fma_f32 %s, %s, %s, %s' % (dst, a, z, add),
            'v_fmac_f32_dpp %s, %s, %s%s %s' % (dst, z, '-' if neg else '', b, DPP)]


def zip2(*ls):
    out = []
    for k in range(max(len(l) for l in ls)):
        for l in ls:
            if k < len(l): out.append(l[k])
    return out


def gen(path, order=ORDER0, plan=None, dumps=(), stamps=(), pf_depth=2, pf=True, maxtry=1 << 18):
    pl = dict(PLAN0); pl.update(plan or {})
    RG = regs(); emit.RESOLVE[0] = RG
    NCH = len(order); assert NCH == 42
    K = NAME + '_kernel'
    LS = 'LS'
    tails = []

    def slot(k): return k % 6
    def dma(k):
        c = order[k]; m0 = 's_add_u32 m0, %s, %d' % (sMQ, slot(k) * 16384)
        def four(srds, vs, ss):
            return ['buffer_load_dwordx4 %s, %s, %s offen offset:%d lds' % (vs[i], R4(srds[i]), ss[i], i * 1024) for i in range(4)]
        if c[0] == 'B':
            su = ['s_add_u32 %s, %s, %d' % (sA, sBb, c[1] * 128), 's_add_u32 %s, %s, %d' % (sB, sBb, c[1] * 128 + 5120)]
            d = four([SBRE, SBIM] * 2, ['@DR.0', '@DR.1'] * 2, [sA, sA, sB, sB])
        elif c[0] == 'W1':
            o = c[2] * 229376 + c[1] * 256
            su = ['s_add_u32 %s, %s, %d' % (sA, sW1b, o), 's_add_u32 %s, %s, %d' % (sB, sW1b, (o - 1920) & 0xffffffff)]
            d = four([SW1] * 4, ['@DT.0', '@DT.1'] * 2, [sA, sA, sB, sB])
        elif c[0] == 'W2':
            o = (128 * c[2] + 16 * c[3]) * 896
            su = ['s_add_u32 %s, %s, %d' % (sA, sO[2 * c[1]], o), 's_add_u32 %s, %s, %d' % (sB, sO[2 * c[1] + 1], o)]
            d = four([SW2] * 4, ['@DT.0', '@DT.1'] * 2, [sA, sA, sB, sB])
        elif c[0] == 'OW':
            o = 16 * c[1] * 896
            su = ['s_add_u32 %s, %s, %d' % (sA, sOW, o), 's_add_u32 %s, %s, %d' % (sB, sOW, o + 128 * 896 - 2048)]
            d = four([SW2] * 4, ['@DT.0', '@DT.1'] * 2, [sA, sA, sB, sB])
        else:
            base = sOCr[c[1]] if c[0] == 'C' else sOCo
            srd_ = (SCIM if c[2] else SCRE) if c[0] == 'C' else SOC
            su = ['s_add_u32 %s, %s, 12288' % (sB, base)]
            d = four([srd_] * 4, ['@DR.0', '@DR.1'] * 2, [base, base, sB, sB])
        return [m0] + su, d
    def wread(k, u):
        c = order[k]; sl = slot(k)
        if c[0] in ('B', 'C', 'OC'):
            return ['ds_read_b128 @W.%d:%d, @ra.%d offset:%d' % (4 * u, 4 * u + 3, u + (4 if sl >= 4 else 0), (sl % 4) * 16384)]
        a = '@trB' if sl >= 4 else '@trA'
        return ['ds_read_b64_tr_b16 @W.%d:%d, %s offset:%d' % (4 * u + 2 * rd, 4 * u + 2 * rd + 1, a, (sl % 4) * 16384 + u * 4096 + rd * 1024)
                for rd in range(2)]
    def actset(c):
        if c[0] == 'W2': return ['Ha0', 'Ha1', 'Hb0', 'Hb1'][2 * c[2] + c[3]]
        if c[0] == 'C': return ['hre', 'him'][c[2]]
        if c[0] == 'OW': return 'O%d' % c[1]
        if c[0] == 'OC': return 'O2'
    def accof(c):
        return {'B': 'U', 'W1': None, 'W2': None, 'C': None, 'OW': 'own', 'OC': 'own'}[c[0]] or \
            (('Aa', 'Ab')[c[1]] if c[0] == 'W1' else 'r%d' % c[1])
    started = {}
    def mfma(k, u, role):
        c = order[k]; acc = accof(c); w = '@W.%d:%d' % (4 * u, 4 * u + 3)
        first = (role, acc) not in started; started[(role, acc)] = 1
        cin = '0' if first else '@%s.0:15' % acc
        if c[0] == 'B': a, b = '@X.%d:%d' % (16 * c[1] + 4 * u, 16 * c[1] + 4 * u + 3), w
        elif c[0] == 'W1': a, b = w, '@X.%d:%d' % (16 * c[2] + 4 * u, 16 * c[2] + 4 * u + 3)
        else: a, b = '@%s.%d:%d' % (actset(c), 4 * u, 4 * u + 3), w
        return 'v_mfma_f32_32x32x16_bf16 @%s.0:15, %s, %s, %s' % (acc, a, b, cin)
    first_use = {}; last_r = {}
    for k, c in enumerate(order):
        if actset(c) and actset(c) not in first_use: first_use[actset(c)] = k
        if c[0] in ('W2', 'C'): last_r[c[1]] = k
    kW2 = min(k for k, c in enumerate(order) if c[0] in ('W2', 'OW'))
    kC = min(k for k, c in enumerate(order) if c[0] in ('C', 'OC'))
    kW1last = max(k for k, c in enumerate(order) if c[0] == 'W1'); kBlast = max(k for k, c in enumerate(order) if c[0] == 'B')
    assert kW2 > kW1last and kC > kBlast

    P = Plan()
    for g in range(7):
        for u in range(4):
            P.put(LS, g, u, ['ds_read_b128 @X.%d:%d, @xa.%d offset:%d' % (16 * g + 4 * u, 16 * g + 4 * u + 3, u, g * 1024)])
        P.put(LS, g, 3, ['ds_read_b128 @Qf.0:3, @qa offset:%d' % (g * 1024), 'ds_read_b128 @gf.0:3, @gwa offset:%d' % (g * 128)])
        cin = '0' if g == 0 else '@st.0:15'
        P.put(LS, g + 1, 0, ['v_mfma_f32_32x32x16_bf16 @st.0:15, @gf.0:3, @Qf.0:3, %s' % cin])
        P.put(LS, g + 1, 1, ['v_dot2c_f32_bf16 @sq, @Qf.%d, @Qf.%d' % (j, j) for j in (0, 1)])
        P.put(LS, g + 1, 2, ['v_dot2c_f32_bf16 @sq, @Qf.%d, @Qf.%d' % (j, j) for j in (2, 3)])
    P.put(LS, 7, 3, ['v_mov_b32 @sw.0, @st.0', 'v_mov_b32 @sw.1, @sq', ('ds_write_b64 @sta, @sw.0:1', 'ST')])
    P.publish(LS, max(7, pl['fin'][0] - 2), 'ST')
    lam = '''v_lshlrev_b32 @lr.0, 16, @lr.0
v_lshlrev_b32 @lr.1, 16, @lr.1
v_lshlrev_b32 @lr.2, 16, @lr.2
v_mul_f32 @lr.2, 0x3fb8aa3b, @lr.2
v_exp_f32 @lr.2, @lr.2
v_mul_f32 @lr.6, @lr.0, @lr.0
v_fmac_f32 @lr.6, @lr.1, @lr.1
v_cvt_pk_bf16_f32 @lr.2, @lr.2, @lr.2
v_rcp_f32 @lr.6, @lr.6
v_lshlrev_b32 @lr.2, 16, @lr.2
v_mul_f32 @lr.4, @lr.2, @lr.0
v_mul_f32 @lr.5, @lr.2, @lr.1
v_mul_f32 @lr.4, 0x3fb8aa3b, @lr.4
v_mul_f32 @lr.5, 0.15915494309189532, @lr.5
v_exp_f32 @lr.4, @lr.4
v_fract_f32 @lr.5, @lr.5
v_cos_f32 @lr.7, @lr.5
v_sin_f32 @lr.8, @lr.5
v_add_f32 @lr.6, @lr.6, @lr.6
v_mul_f32 @la, @lr.7, @lr.4
v_mul_f32 @lr.8, @lr.8, @lr.4
v_add_f32 @lr.7, -1.0, @la
v_xor_b32 @lb, @lr.3, @lr.8
v_mul_f32 @lr.9, @lr.7, @lr.0
v_mul_f32 @lr.10, @lr.7, @lr.1
v_fmac_f32 @lr.9, @lr.8, @lr.1
v_fma_f32 @lr.10, -@lr.8, @lr.0, @lr.10
v_mul_f32 @lr.9, @lr.9, @lr.6
v_mul_f32 @cc.1, @lr.10, @lr.6
v_xor_b32 @cc.0, @lr.3, @lr.9'''.split('\n')
    def sq_(d, s_):
        da, db = d; sa, sb = s_
        return ['v_mul_f32 @lr.11, %s, %s' % (sb, sb), 'v_add_f32 @lr.12, %s, %s' % (sa, sa),
                'v_fma_f32 %s, %s, %s, -@lr.11' % (da, sa, sa), 'v_mul_f32 %s, @lr.12, %s' % (db, sb)]
    pw = lambda n: ('@%s.0' % n, '@%s.1' % n)
    lam += sq_(('@lr.4', '@lr.5'), ('@la', '@lb')) + sq_(('@lr.6', '@lr.7'), ('@lr.4', '@lr.5')) + sq_(pw('l8'), ('@lr.6', '@lr.7')) + sq_(pw('l16'), pw('l8'))
    lamL = lam + ['v_cndmask_b32 @M.0, 1.0, @l16.0, %s' % HM, 'v_cndmask_b32 @M.1, 0, @l16.1, %s' % HM]
    lamS = lam + sq_(pw('l32'), pw('l16')) + sq_(pw('l64'), pw('l32')) + sq_(pw('l128'), pw('l64')) + [
        'v_mul_f32 @lr.4, @l16.0, @l32.0', 'v_mul_f32 @lr.5, @l16.0, @l32.1',
        'v_fma_f32 @lr.4, -@l16.1, @l32.1, @lr.4', 'v_fmac_f32 @lr.5, @l16.1, @l32.0',
        'v_cndmask_b32 @M.0, @l32.0, @lr.4, %s' % HM, 'v_cndmask_b32 @M.1, @l32.1, @lr.5, %s' % HM]
    assert pl['lam'][1] < pl['p1'][0]
    P.spread('L', *pl['lam'], lamL); P.spread('S', *pl['lam'], lamS)
    def chain1(i0, pa, pb):
        out = []; prev = '@U.%d' % i0
        for j, i in enumerate(range(i0 + 1, i0 + 8)):
            d = (pa, pb)[j & 1]
            out += cmul(d, '@la', '@lb', prev, '@U.%d' % i, neg=True); prev = d
        return out, prev
    ca_, ea = chain1(0, '@g.0', '@g.1'); cb_, eb = chain1(8, '@g.2', '@g.3')
    p1 = []
    for j in range(7): p1 += [ca_[2 * j], cb_[2 * j], ca_[2 * j + 1], cb_[2 * j + 1]]
    p1 += ['v_fma_f32 @t.1, @l8.0, %s, %s' % (ea, eb),
           'v_mul_f32_dpp @t.2, %s, @cc.1 %s' % (ea, DPP),
           'v_fmac_f32_dpp @t.1, %s, -@l8.1 %s' % (ea, DPP),
           'v_fma_f32 @Ea, @cc.0, %s, @t.2' % ea,
           'v_mul_f32 @t.0, @cc.0, @t.1',
           'v_fmac_f32_dpp @t.0, @t.1, @cc.1 %s' % DPP,
           'v_mov_b32 @t.3, @t.0',
           'v_permlane32_swap_b32 @t.0, @t.3'] + cmul('@t.3', '@l16.0', '@l16.1', '@t.0', '@t.3')
    P.spread('L', *pl['p1'], p1 + [('ds_write_b32 @xo, @t.3 offset:%d' % FX, 'FX'), 'v_cndmask_b32 @Z, 0, @t.0, %s' % HM])
    P.spread('S', *pl['p1'], p1)
    sp = pl['spub']; assert sp > pl['p1'][1]
    P.publish('L', sp - 1, 'FX')
    P.put('S', sp, 0, ['ds_read_b32 @g.0, @xo offset:%d' % FX])
    P.put('S', sp, 2, cmul('@sp.0', '@l32.0', '@l32.1', '@g.0', '@t.3') + ['v_mov_b32 @sp.1, %s' % sT,
          'buffer_store_dwordx2 @sp.0:1, @spo, %s, 0 offen sc1' % R4(SS)] +
          cmul('@g.1', '@l16.0', '@l16.1', '@g.0', '@t.0') + ['v_cndmask_b32 @Z, @g.0, @g.1, %s' % HM])
    f0 = pl['fin'][0]; assert f0 >= 9
    P.put(LS, f0 - 1, 3, ['v_lshlrev_b32 @st.15, 3, @l', 'v_add_u32 @st.15, %s, @st.15' % sXO] +
          ['ds_read_b64 @st.%d:%d, @st.15 offset:%d' % (2 * j, 2 * j + 1, j * 7168) for j in range(4)])
    fin = '''v_add_f32 @st.0, @st.0, @st.2
v_add_f32 @st.1, @st.1, @st.3
v_add_f32 @st.4, @st.4, @st.6
v_add_f32 @st.5, @st.5, @st.7
v_add_f32 @st.0, @st.0, @st.4
v_add_f32 @st.1, @st.1, @st.5
v_mov_b32 @st.2, @st.0
v_mov_b32 @st.3, @st.1
v_bfe_u32 @st.8, @l, 2, 1
v_bfe_u32 @st.9, @l, 3, 2
v_permlane32_swap_b32 @st.0, @st.2
v_permlane32_swap_b32 @st.1, @st.3
v_mul_f32 @st.0, 0xbb124925, @st.0
v_add_f32 @st.1, @st.1, @st.3
v_mul_f32 @st.2, 0x3fb8aa3b, @st.2
v_mul_f32 @st.1, 0x3b124925, @st.1
v_exp_f32 @st.3, @st.2
v_fma_f32 @st.1, -@st.0, @st.0, @st.1
v_exp_f32 @st.2, -@st.2
v_max_f32 @st.1, 0, @st.1
v_lshlrev_b32 @st.8, 6, @st.8
v_add_f32 @st.1, 0x3727c5ac, @st.1
v_add_f32 @st.2, 1.0, @st.2
v_rsq_f32 @st.4, @st.1
v_rcp_f32 @st.2, @st.2
v_lshl_add_u32 @st.8, @st.9, 4, @st.8
v_and_b32 @st.9, 3, @l
v_mul_f32 @st.1, @st.1, @st.4
v_lshl_add_u32 @st.8, @st.9, 2, @st.8
v_mul_f32 @c1, 0xc0135761, @st.4
v_lshl_add_u32 @st.8, {tt}, 7, @st.8
v_mul_f32 @st.5, @st.4, @st.4
v_fma_f32 @kk, @st.3, @st.1, @st.1
GWR
v_mul_f32 @st.4, 0xbdd2d3e8, @st.4
v_min_f32 @kk, 0x7149f2ca, @kk
v_mul_f32 @c3, @st.5, @st.4
v_cndmask_b32 @st.0, @st.0, 0, {hm}
v_cndmask_b32 @st.1, @st.1, 0, {hm}
v_cvt_pk_bf16_f32 @Bx.0, @st.0, @st.0
v_cvt_pk_bf16_f32 @st.6, @st.1, @st.1
v_and_b32 @st.5, 0xffff0000, @Bx.0
v_and_b32 @st.6, 0xffff0000, @st.6
v_sub_f32 @st.0, @st.0, @st.5
v_sub_f32 @st.1, @st.1, @st.6
v_cvt_pk_bf16_f32 @Bx.2, @st.0, @st.0
v_cvt_pk_bf16_f32 @Bx.1, @st.6, @st.1
v_mov_b32 @Bx.3, 0'''.format(tt=sTT, hm=HM).split('\n')
    fin[fin.index('GWR')] = ('ds_write_b32 @st.8, @st.2 offset:%d' % GA, 'G')
    P.spread(LS, *pl['fin'], fin)
    for ab, nm in enumerate('ab'):
        ld, ck, kx = pl['cs%s_ld' % nm], pl['cs%s_ck' % nm], pl['kx%s' % nm]
        assert ld < ck < kx - 1 and kx > pl['fin'][1]
        ldi = 'buffer_load_dwordx2 @Ax.2:3, @cso, %s, 0 offen offset:%d sc1' % (R4(SWS), ab * 1024)
        P.put('S', ld, 1, ['v_subrev_u32 @b1o, %d, @cso' % WS_CS, 'v_lshrrev_b32 @b1o, 2, @b1o', ldi,
                           'global_load_ushort @b1, @b1o, %s offset:%d' % (PP('b1'), ab * 256)])
        P.put('S', ck, 1, ['v_cmp_ne_u32 vcc, %s, @Ax.3\ns_cbranch_vccnz RCS%d\nBCS%d:' % (sT, ab, ab),
                           'v_mov_b32 @Ax.0, @Ax.2', 'v_lshl_or_b32 @Ax.1, @b1, 16, @b1', 'v_mov_b32 @Ax.3, 0',
                           ('ds_write_b64 @xo, @Ax.0:1 offset:%d' % (CSX + ab * 1024), 'CS%d' % ab)])
        tails.append('RCS%d:\ns_mov_b32 %s, 0\nRCS%dl:\n%s\ns_add_u32 %s, %s, 1\ns_waitcnt vmcnt(0)\nv_cmp_ne_u32 vcc, %s, @Ax.3\n'
                     's_cmp_lt_u32 %s, %d\ns_cbranch_scc0 BCS%d\ns_cbranch_vccnz RCS%dl\ns_branch BCS%d'
                     % (ab, sTRY, ab, ldi, sTRY, sTRY, sT, sTRY, maxtry, ab, ab, ab))
        P.publish('S', kx - 2, 'CS%d' % ab)
        P.put('L', kx - 1, 0, ['ds_read_b64 @Ax.0:1, @xo offset:%d' % (CSX + ab * 1024)])
        P.put('L', kx - 1, 3, ['v_mov_b32 @Ax.3, 0', 'v_mov_b32 @Ax.2, @Ax.0'])
        acc = '@A%s.0:15' % nm
        kk_ = [k for k, c in enumerate(order) if c[0] == 'W1' and c[1] == ab]
        assert kx > kk_[0] + 1
        P.put(LS, kx, 1, ['v_mfma_f32_32x32x16_bf16 %s, @Ax.0:3, @Bx.0:3, %s' % (acc, acc)])
        for e in range(2):
            p0, p1_ = pl['g%s%d' % (nm, e)][:2]; gg = pl['g%s%d' % (nm, e)][2:] or (0, 3)
            assert p0 > kx and p0 > kk_[-1] + 1
            it = []
            for grp in range(2):
                el = ['@A%s.%d' % (nm, 8 * e + 4 * grp + j) for j in range(4)]; t = ['@g.%d' % j for j in range(4)]
                for f in ('v_mul_f32 {t}, {a}, {a}', 'v_fma_f32 {t}, {t}, @c3, @c1', 'v_mul_f32 {t}, {t}, {a}', 'v_exp_f32 {t}, {t}',
                          'v_fma_f32 {t}, {t}, @kk, @kk', 'v_rcp_f32 {t}, {t}', 'v_mul_f32 {t}, {t}, {a}'):
                    it += [f.format(t=t[j], a=el[j]) for j in range(4)]
                it += ['v_cvt_pk_bf16_f32 @A%s.%d, %s, %s' % (nm, 8 * e + 2 * grp + j, t[2 * j], t[2 * j + 1]) for j in range(2)]
            tag = 'H%s%d' % (nm, e)
            it.append(('ds_write_b128 @hwr, @A%s.%d:%d offset:%d' % (nm, 8 * e, 8 * e + 3, ab * 16384 + e * 4096), tag))
            P.spread(LS, p0, p1_, it, *gg)
            kf = first_use[tag]; assert p1_ <= kf - 1, (tag, p1_, kf)
            P.publish(LS, kf - 1, tag)
            for u in range(4):
                P.put(LS, kf, u, ['ds_read_b128 @%s.%d:%d, @hrd offset:%d' % (tag, 4 * u, 4 * u + 3, ab * 16384 + e * 4096 + u * 1024)])
    gel = sorted([pl['ga0'], pl['ga1'], pl['gb0'], pl['gb1']])
    for a_, b_ in zip(gel, gel[1:]): assert (a_[1], (a_[2:] or (0, 3))[1]) < (b_[0], (b_[2:] or (0, 3))[0])
    tu = []
    for i in range(0, 16, 2):
        tu += ['v_mul_f32_dpp @t.%d, @U.%d, @cc.1 %s' % (1 + j, i + j, DPP) for j in range(2)]
        tu += ['v_fma_f32 @U.%d, @cc.0, @U.%d, @t.%d' % (i + j, i + j, 1 + j) for j in range(2)]
    assert pl['tu'][0] > sp
    P.spread(LS, *pl['tu'], tu)
    lds_ = ['buffer_load_dwordx2 @LB.%d:%d, %s, %s, 0 offen offset:%d sc1' % (2 * i, 2 * i + 1, '@lbo2' if i >= 8 else '@lbo', R4(SS), (i & 7) * 512)
            for i in range(15, -1, -1)]
    P.spread('S', pl['lb_ld'], pl['lb_ld'], lds_)
    cnt = ['s_mov_b32 %s, 0' % sT1] + ['v_cmp_eq_u32 vcc, %s, @LB.%d\ns_bcnt1_i32_b64 %s, vcc\ns_add_u32 %s, %s, %s' % (sT, 2 * i + 1, sT0, sT1, sT1, sT0)
                                       for i in range(15, -1, -1)]
    fin_cnt = 's_lshl_b32 %s, %s, 5\ns_cmp_lg_u32 %s, %s' % (sT0, sC, sT0, sT1)
    hor = []
    for i in range(14, -1, -1): hor += cmul('@LB.%d' % (2 * i), '@l128.0', '@l128.1', '@LB.%d' % (2 * i + 2), '@LB.%d' % (2 * i))
    hor += ['v_mov_b32 @LB.1, @LB.0', 'v_permlane32_swap_b32 @LB.0, @LB.1'] + cmul('@K', '@l64.0', '@l64.1', '@LB.1', '@LB.0')
    P.spread('S', *pl['lb_ck'], cnt + [fin_cnt + '\ns_cbranch_scc1 RLB\nBLB:'] + hor + [('ds_write_b32 @xo, @K offset:%d' % KX, 'KX')])
    tails.append('RLB:\ns_mov_b32 %s, 0\nRLBl:\n' % sTRY + '\n'.join(lds_) + '\ns_add_u32 %s, %s, 1\ns_waitcnt vmcnt(0)\n' % (sTRY, sTRY) + '\n'.join(cnt) +
                 '\ns_cmp_lt_u32 %s, %d\ns_cbranch_scc0 BLB\n' % (sTRY, maxtry) + fin_cnt + '\ns_cbranch_scc1 RLBl\ns_branch BLB')
    q0, q1 = pl['p2']; assert q0 > pl['lb_ck'][1] and q0 > pl['tu'][1]
    P.publish('S', q0 - 1, 'KX'); P.publish(LS, q0 - 2, 'G'); assert q0 - 2 >= pl['fin'][1]
    P.put('L', q0, 0, ['ds_read_b32 @K, @xo offset:%d' % KX])
    P.put(LS, q0 - 1, 2, ['v_lshrrev_b32 @t.0, 5, @l', 'v_lshlrev_b32 @t.0, 6, @t.0', 'v_lshl_add_u32 @t.0, %s, 7, @t.0' % sTT])
    P.put(LS, q0 - 1, 3, ['ds_read_b128 @G.%d:%d, @t.0 offset:%d' % (4 * j, 4 * j + 3, GA + 16 * j) for j in range(4)])
    hwa = '''v_and_b32 @t.3, 7, @l
v_bfe_u32 @t.2, @l, 4, 1
v_lshl_add_u32 @t.3, @t.2, 3, @t.3
v_lshl_add_u32 @t.3, {q}, 4, @t.3
v_bfe_u32 @t.2, @t.3, 1, 3
v_lshrrev_b32 @t.1, 5, @l
v_xor_b32 @t.2, @t.1, @t.2
v_lshlrev_b32 @t.3, 6, @t.3
v_lshl_add_u32 @t.3, @t.2, 3, @t.3
v_bfe_u32 @t.2, @l, 3, 1
v_lshl_add_u32 @t.3, @t.2, 12, @t.3
v_lshl_add_u32 @t.3, {tt}, 13, @t.3
v_add_u32 @t.3, {b}, @t.3'''.format(q=sQ, tt=sTT, b=XR + 32768).split('\n')
    p2 = cmul('@t.0', '@M.0', '@M.1', '@K', '@Z') + hwa[:6] + ['v_fma_f32 @Z, @l8.0, @t.0, @Ea'] + hwa[6:9] + \
        ['v_fmac_f32_dpp @Z, @t.0, @l8.1 %s' % DPP] + hwa[9:]
    for j in range(8):
        pa = '@t.0' if j == 0 else '@U.%d' % (j - 1); pb = '@Z' if j == 0 else '@U.%d' % (7 + j)
        a_ = cmul('@U.%d' % j, '@la', '@lb', pa, '@U.%d' % j); b_ = cmul('@U.%d' % (8 + j), '@la', '@lb', pb, '@U.%d' % (8 + j))
        p2 += [a_[0], b_[0], a_[1], b_[1]]
    for j in range(4):
        p2 += ['v_mul_f32 @G.%d, @U.%d, @G.%d' % (i, i, i) for i in range(4 * j, 4 * j + 4)]
        p2 += ['v_cvt_pk_bf16_f32 @G.%d, @G.%d, @G.%d' % (4 * j + m, 4 * j + 2 * m, 4 * j + 2 * m + 1) for m in range(2)]
        if j: p2.append('v_xor_b32 @t.3, %d, @t.3' % (16 * (j ^ (j - 1))))
        p2.append(('ds_write_b64 @t.3, @G.%d:%d' % (4 * j, 4 * j + 1), 'h'))
    P.spread(LS, q0, q1, p2, g0=2)
    kh_ = min(first_use['hre'], first_use['him']); assert q1 <= kh_ - 1
    P.publish(LS, kh_ - 1, 'h')
    hra = '''v_lshrrev_b32 @hr.0, 5, @l
v_bfe_u32 @hr.1, @l, 3, 1
v_lshl_add_u32 @hr.1, @hr.0, 2, @hr.1
v_lshlrev_b32 @hr.0, 9, @hr.0
v_bfe_u32 @so, @l, 4, 1
v_lshlrev_b32 @so, 2, @so
v_and_or_b32 @so, @l, 3, @so
v_xor_b32 @hr.1, @hr.1, @so
v_lshl_add_u32 @hr.0, @hr.1, 3, @hr.0
v_bfe_u32 @so, @l, 2, 2
v_lshl_add_u32 @hr.0, @so, 6, @hr.0
v_lshl_add_u32 @hr.0, {tt}, 13, @hr.0
v_add_u32 @hr.0, {b}, @hr.0
v_xor_b32 @hr.1, 0x110, @hr.0
s_and_b32 {t0}, {q}, 1
s_lshl_b32 {t1}, {tt}, 1
s_add_u32 {t0}, {t0}, {t1}
s_lshl_b32 {t0}, {t0}, 11
v_lshlrev_b32 @so, 4, @l
v_add_u32 @so, {t0}, @so'''.format(tt=sTT, b=XR + 32768, t0=sT0, t1=sT1, q=sQ).split('\n')
    assert kh_ - 1 > pl['lb_ck'][1]
    P.spread(LS, kh_ - 1, kh_ - 1, hra)
    def hreads(nm, off):
        return [['ds_read_b64_tr_b16 @%s.%d:%d, @hr.%d offset:%d' % (nm, 4 * u + 2 * rd, 4 * u + 2 * rd + 1, rd, off + u * 1024) for rd in range(2)]
                for u in range(4)]
    for part, nm in enumerate(('hre', 'him')):
        for u, l_ in enumerate(hreads(nm, part * 4096)): P.put(LS, first_use[nm], u, l_)
    ko = min(first_use['O0'], first_use['O1'], first_use['O2'])
    assert ko - 1 > max(first_use[n] for n in ('Ha0', 'Ha1', 'Hb0', 'Hb1', 'hre', 'him'))
    P.put(LS, ko - 1, 0, ['s_lshr_b32 s2, %s, 1' % sQ, 'v_lshl_add_u32 @hrd, s2, 14, @hrd',
                          'v_lshl_add_u32 @hr.0, s2, 12, @hr.0', 'v_lshl_add_u32 @hr.1, s2, 12, @hr.1'])
    for e in range(2):
        for u in range(4):
            P.put(LS, first_use['O%d' % e], u, ['ds_read_b128 @O%d.%d:%d, @hrd offset:%d' % (e, 4 * u, 4 * u + 3, e * 4096 + u * 1024)])
    for u, l_ in enumerate(hreads('O2', 0)): P.put(LS, first_use['O2'], u, l_)
    for r in range(3):
        it = ['v_cvt_pk_bf16_f32 @r%d.%d, @r%d.%d, @r%d.%d' % (r, j, r, 2 * j, r, 2 * j + 1) for j in range(8)]
        st_ = ['buffer_store_dwordx4 @r%d.%d:%d, @so, %s, %s offen offset:%d sc1' % (r, 4 * hf, 4 * hf + 3, R4(SWS), sP[r], hf * 1024) for hf in range(2)]
        P.spread(LS, last_r[r] + 2, last_r[r] + 2, it[:4] + st_[:1] + it[4:] + st_[1:], g0=1)
    P.put('L', kW2 - 5, 3, ['v_lshrrev_b32 @DT.1, 3, @l', 'v_and_b32 @DT.0, 0x70, @DT.0', 'v_mad_u32_u24 @DT.0, @DT.1, %s, @DT.0' % sB,
                            'v_add_u32 @DT.1, 6144, @DT.0'])
    P.f[('L', kW2 - 5, 3)][-1].insert(0, 's_movk_i32 %s, 896' % sB)
    P.put('L', kC - 5, 3, ['v_add_u32 @DR.1, 6144, @DR.1'])
    pre = pl['pre']; assert pre >= 38
    it = '''s_lshr_b32 {t0}, {q}, 1
s_and_b32 {t1}, {q}, 1
v_lshrrev_b32 @xv.7, 5, @l
v_lshlrev_b32 @xv.7, 1, @xv.7
v_add_u32 @xv.7, {t0}, @xv.7
v_and_b32 @Dv, 31, @l
v_lshl_add_u32 @Dv, {t1}, 5, @Dv
v_lshl_add_u32 @Dv, {s}, 6, @Dv
v_lshlrev_b32 @Dv, 1, @Dv
s_movk_i32 {t1}, 7168
v_mad_u32_u24 @t.0, @xv.7, {t1}, @Dv
v_lshlrev_b32 @xv.7, 5, @xv.7
v_lshl_add_u32 @t.1, {tt}, 7, @xv.7
s_lshl_b32 {t0}, {c}, 1
s_add_u32 {t0}, {t0}, {tt}
s_mul_i32 {xo}, {t0}, 28672
s_add_u32 {t1}, {xo}, 3584
global_load_ushort @b2, @Dv, {pb2}
global_load_ushort @Dv, @Dv, {pd}'''.format(t0=sT0, t1=sT1, q=sQ, s=sS, tt=sTT, c=sC, xo=sXO, pb2=PP('b2'), pd=PP('dskip')).split('\n')
    it += ['buffer_load_ushort @xv.%d, @t.0, %s, %s offen offset:%d' % (k, R4(SX), sT1 if k >= 4 else sXO, (k & 3) * 896) for k in range(8)]
    it += ['ds_read_b128 @Gt.%d:%d, @t.1 offset:%d' % (4 * j, 4 * j + 3, GA + 16 * j) for j in range(2)]
    P.spread(LS, pre, pre, it)
    it = ['v_lshlrev_b32 @b2, 16, @b2', 'v_lshlrev_b32 @Dv, 16, @Dv']
    it += ['v_lshlrev_b32 @xv.%d, 16, @xv.%d' % (k, k) for k in range(8)]
    it += ['v_fma_f32 @xv.%d, @xv.%d, @Dv, -@b2' % (k, k) for k in range(8)]
    it += ['v_fma_f32 @xv.%d, @xv.%d, @Gt.%d, @b2' % (k, k, k) for k in range(8)]
    P.spread(LS, 42, 42, it)

    def dump(s, name, n, sl):
        for j in range(n):
            if j % 16 == 0: s('s_add_u32 %s, %s, %d' % (sDB2, sDBG, sl * 256 + j * 256))
            s('buffer_store_dword @%s.%d, @dbg, %s, %s offen offset:%d' % (name, j, R4(SWS), sDB2, (j % 16) * 256))
    def srd(s, d, n, bias=0, size=None):
        if bias:
            s('s_sub_u32 s%d, s%d, %d\ns_subb_u32 s%d, s%d, 0' % (d, P_[n], bias, d + 1, P_[n] + 1))
        else:
            s('s_mov_b32 s%d, s%d\ns_mov_b32 s%d, s%d' % (d, P_[n], d + 1, P_[n] + 1))
        s('s_mov_b32 s%d, %d\ns_mov_b32 s%d, 0x20000' % (d + 2, (size or SZ[n]) + bias, d + 3))

    c0 = Stream()
    c0('''s_cmp_ge_u32 s2, 256
s_cbranch_scc1 Lend
s_load_dwordx16 s[36:51], s[0:1], 0
s_load_dwordx16 s[52:67], s[0:1], 64
s_load_dwordx4 s[68:71], s[0:1], 128''')
    if stamps: c0('s_memrealtime s[0:1]')
    c0.raw('v_lshrrev_b32 @pt.0, 6, v0')
    c0.raw('v_and_b32 @l, 63, v0')
    c0('''v_readfirstlane_b32 {w}, @pt.0
s_and_b32 {a}, s2, 1
s_lshl_b32 {a}, {a}, 2
s_bfe_u32 {b}, s2, 0x20001
s_lshr_b32 {t0}, s2, 3
s_and_b32 {q}, {w}, 3
s_lshr_b32 {tt}, {w}, 2
s_cmp_lt_u32 {t0}, 4
s_cbranch_scc1 HELP
s_sub_u32 {t0}, {t0}, 4
s_lshr_b32 {t1}, {t0}, 3
s_add_u32 {s}, {t1}, {a}
s_and_b32 {t1}, {t0}, 7
s_lshl_b32 {b}, {b}, 3
s_add_u32 {c}, {b}, {t1}
s_cmp_ge_u32 {t0}, 24
s_cselect_b32 {s}, 3, {s}
s_cselect_b32 {t1}, {a}, 0
s_add_u32 {c}, {c}, {t1}
v_lshrrev_b32 @pt.0, 3, @l
v_lshrrev_b32 @pt.1, 4, @l
v_and_b32 @pt.2, 7, @l
v_lshrrev_b32 @pt.3, 5, @l
v_and_b32 @pt.4, 3, @pt.0
v_xor_b32 @pt.5, @pt.2, @pt.1
v_lshlrev_b32 @pt.5, 4, @pt.5
s_and_b32 {t0}, {q}, 1
s_lshl_b32 {t0}, {t0}, 6
s_movk_i32 {t1}, 896
v_lshl_add_u32 @pt.6, @pt.3, 4, @pt.4
v_xor_b32 @xd, {t0}, @pt.5
v_mad_u32_u24 @xd, @pt.6, {t1}, @xd
s_lshl_b32 {a}, {c}, 1
s_add_u32 {a}, {a}, {tt}
s_lshl_b32 {a}, {a}, 3
s_add_u32 {a}, {a}, {q}
s_mul_i32 {xo}, {a}, 3584
s_mul_i32 {mq}, {w}, 7168
s_add_u32 {mq}, {mq}, {xr}
v_and_b32 @lr.4, 7, @l
v_bfe_u32 @lr.5, @l, 4, 1
v_lshl_add_u32 @lr.4, @lr.5, 3, @lr.4
v_lshl_add_u32 @lr.4, {q}, 4, @lr.4
v_lshl_add_u32 @lr.4, {s}, 6, @lr.4
v_lshlrev_b32 @lr.4, 1, @lr.4
s_cmp_ge_u32 {w}, 4
s_cbranch_scc1 ROLES'''.format(w=sW, q=sQ, tt=sTT, c=sC, s=sS, a=sA, b=sB, t0=sT0, t1=sT1, xo=sXO, mq=sMQ, xr=XR))

    def xdma(s, g):
        s('s_add_u32 m0, %s, %d' % (sTRY, g * 896))
        s('buffer_load_dwordx4 @xd, %s, %s offen offset:%d lds' % (R4(SX), sXO, g * 128), tag=('x', g))
    def lamld(s):
        for j, n in enumerate(('lre', 'lim', 'ldt')): s('global_load_ushort @lr.%d, @lr.4, %s' % (j, PP(n)))

    def role(R_):
        s = c0.fork()
        if R_ == 'S': s('ROLES:')
        if R_ == 'L':
            s('''v_mad_u32_u24 @DR.0, @pt.0, {t1}, @pt.5
v_xor_b32 @DR.1, 64, @DR.0
s_lshl_b32 {a}, {s}, 2
s_add_u32 {a}, {a}, {q}
s_mul_i32 {b}, {a}, 14336'''.format(t1=sT1, a=sA, b=sB, s=sS, q=sQ))
        s('s_mov_b32 %s, %s' % (sTRY, sMQ))
        s('s_lshl_b32 %s, %s, 12\ns_add_u32 %s, %s, %d' % (sMQ, sQ, sMQ, sMQ, RING))
        s('s_waitcnt lgkmcnt(0)')
        srd(s, SX, 'x')
        xdma(s, 0)
        s('s_load_dword %s, %s, 0' % (sT, PP('ws')))
        if R_ == 'L':
            srd(s, SBRE, 'bre'); srd(s, SBIM, 'bim', 1024)
            s('s_mov_b32 %s, %s' % (sBb, sB))
            assert [c[0] for c in order[:6]] == ['B'] * 6
            for k in range(6):
                su, d = dma(k)
                for t in su: s(t)
                for t in d: s(t, tag=('c', k))
                if k == 0: lamld(s)
                xdma(s, k + 1)
        else:
            srd(s, SS, 'gw')
            s('v_lshlrev_b32 @pt.7, 2, @l\ns_lshl_b32 %s, %s, 8\nv_add_u32 @pt.7, %s, @pt.7\ns_add_u32 m0, %s, %d' % (sT0, sQ, sT0, sT0, GW))
            s('buffer_load_dword @pt.7, %s, 0 offen lds' % R4(SS), tag=('x', 0))
            lamld(s)
            for g in range(1, 7): xdma(s, g)
            s('v_mov_b32 @pt.8, 0x3f803f80\nv_mov_b32 @pt.9, 0x3f803f80\nv_mov_b32 @pt.10, 0x3f803f80\nv_mov_b32 @pt.11, 0x3f803f80')
            s('v_lshlrev_b32 @pt.7, 4, @l\nds_write_b128 @pt.7, @pt.8:11 offset:%d' % ONES)
        srd(s, SWS, 'ws'); srd(s, SOUT, 'out')
        s('s_mov_b32 s96, 0\ns_mov_b32 s97, -1\ns_mov_b32 %s, 0x3f80\ns_mov_b32 %s, 0x3f800000' % (sLO, sHI))
        if R_ == 'L':
            srd(s, SW1, 'w1', 2048); srd(s, SW2, 'w2', 2048); srd(s, SCRE, 'cre'); srd(s, SCIM, 'cim')
            s('s_cmp_ge_u32 %s, 2\ns_cselect_b32 s%d, s%d, s%d\ns_cselect_b32 s%d, s%d, s%d\ns_mov_b32 s%d, %d\ns_mov_b32 s%d, 0x20000'
              % (sQ, SOC, SCIM, SCRE, SOC + 1, SCIM + 1, SCRE + 1, SOC + 2, SZ['cre'], SOC + 3))
            s('''s_mul_i32 {w1b}, {q}, 57344
s_lshl_b32 {a}, {s}, 9
s_add_u32 {w1b}, {w1b}, {a}
s_add_u32 {w1b}, {w1b}, 2048
s_lshl_b32 {a}, {s}, 3
s_add_u32 {a}, {a}, {q}
s_mul_i32 {a}, {a}, 28672
s_lshl_b32 {b}, {s}, 7
s_add_u32 {ow}, {a}, {b}
s_add_u32 {ow}, {ow}, 2048'''.format(w1b=sW1b, q=sQ, a=sA, b=sB, s=sS, ow=sOW))
            for d in range(6):
                s('''s_add_u32 {t0}, {s}, {d1}
s_sub_u32 {t1}, {t0}, 7
s_cmp_ge_u32 {t0}, 7
s_cselect_b32 {t0}, {t1}, {t0}
s_lshl_b32 {t0}, {t0}, 7
s_add_u32 {o}, {a}, {t0}'''.format(t0=sT0, t1=sT1, s=sS, d1=d + 1, o=sO[d], a=sA))
                if not d & 1: s('s_add_u32 %s, %s, 2048' % (sO[d], sO[d]))
            s('s_and_b32 {a}, {q}, 1\ns_mul_i32 {a}, {a}, 28672\ns_add_u32 {a}, {a}, {b}\ns_mul_i32 {t0}, {s}, 57344\ns_add_u32 {oo}, {a}, {t0}'
              .format(a=sA, b=sB, q=sQ, t0=sT0, s=sS, oo=sOCo))
        else:
            s('''s_lshl_b32 {a}, {s}, 2
s_add_u32 {a}, {a}, {q}
s_lshl_b32 {a}, {a}, 13
s_add_u32 {a}, {a}, {wss}
s_add_u32 s{d}, s{p}, {a}
s_addc_u32 s{d1}, s{p1}, 0
s_mov_b32 s{d2}, 8192'''.format(a=sA, s=sS, q=sQ, wss=WS_S, d=SS, d1=SS + 1, d2=SS + 2, p=P_['ws'], p1=P_['ws'] + 1))
        for r in range(3):
            s('''s_lshr_b32 {b}, {q}, 1
s_add_u32 {b}, {b}, {r2}
s_add_u32 {t0}, {s}, {b}
s_add_u32 {t0}, {t0}, 1
s_sub_u32 {t1}, {t0}, 7
s_cmp_ge_u32 {t0}, 7
s_cselect_b32 {t0}, {t1}, {t0}'''.format(b=sB, q=sQ, r2=2 * r, t0=sT0, t1=sT1, s=sS))
            if R_ == 'L': s('s_mul_i32 {t1}, {t0}, 57344\ns_add_u32 {o}, {a}, {t1}'.format(t0=sT0, t1=sT1, o=sOCr[r], a=sA))
            s('''s_mul_i32 {t1}, {c}, 7
s_add_u32 {t0}, {t0}, {t1}
s_mul_i32 {t0}, {t0}, 6
s_add_u32 {t0}, {t0}, {b}
s_lshl_b32 {t0}, {t0}, 13
s_add_u32 {p}, {t0}, {wp}'''.format(t0=sT0, t1=sT1, c=sC, b=sB, p=sP[r], wp=WS_P))
        s('''v_and_b32 @pt.6, 31, @l
v_bfe_u32 @pt.7, @l, 1, 3
v_xor_b32 @pt.7, @pt.3, @pt.7
v_lshlrev_b32 @pt.7, 4, @pt.7
v_bfe_u32 @pt.8, @l, 3, 2
v_lshl_add_u32 @pt.8, {tt}, 2, @pt.8
s_movk_i32 {t0}, 7168
v_mad_u32_u24 @xa.0, @pt.8, {t0}, @pt.7
v_lshl_add_u32 @xa.0, @pt.2, 7, @xa.0
v_add_u32 @xa.0, {xr}, @xa.0
v_xor_b32 @xa.1, 32, @xa.0
v_xor_b32 @xa.2, 64, @xa.0
v_xor_b32 @xa.3, 0x60, @xa.0
s_lshl_b32 {t0}, {q}, 5
v_xor_b32 @qa, {t0}, @xa.0
v_lshl_add_u32 @gwa, @pt.3, 4, {t0}
v_cmp_eq_u32 vcc, 0, @pt.6
v_add_u32 @pt.9, {ones}, @gwa
v_cndmask_b32 @gwa, @gwa, @pt.9, vcc
v_lshl_add_u32 @ra.0, @pt.6, 7, @pt.7
v_add_u32 @ra.0, {mq}, @ra.0
v_xor_b32 @ra.1, 32, @ra.0
v_xor_b32 @ra.2, 64, @ra.0
v_xor_b32 @ra.3, 0x60, @ra.0
v_add_u32 @ra.4, 0x10000, @ra.0
v_add_u32 @ra.5, 0x10000, @ra.1
v_add_u32 @ra.6, 0x10000, @ra.2
v_add_u32 @ra.7, 0x10000, @ra.3
v_bfe_u32 @pt.8, @l, 2, 2
v_lshl_add_u32 @pt.9, @pt.3, 2, @pt.8
v_lshlrev_b32 @trA, 7, @pt.9
v_lshrrev_b32 @pt.8, 1, @pt.8
s_and_b32 {t0}, {q}, 1
v_xor_b32 @pt.8, {t0}, @pt.8
v_lshl_add_u32 @trA, @pt.8, 6, @trA
v_and_b32 @pt.8, 1, @pt.1
v_lshl_add_u32 @trA, @pt.8, 5, @trA
v_and_b32 @pt.9, 3, @l
v_lshl_add_u32 @trA, @pt.9, 3, @trA
s_lshr_b32 {t0}, {q}, 1
s_lshl_b32 {t0}, {t0}, 11
s_add_u32 {t0}, {t0}, {ring}
v_add_u32 @trA, {t0}, @trA
v_add_u32 @trB, 0x10000, @trA
s_lshl_b32 {t0}, {tt}, 13
s_add_u32 {t0}, {t0}, {xr}
v_lshl_add_u32 @hrd, @l, 4, {t0}
v_lshl_add_u32 @hwr, {q}, 10, @hrd
v_lshl_add_u32 @sta, @l, 3, {try_}
v_lshlrev_b32 @xo, 3, @pt.6
v_lshl_add_u32 @xo, {q}, 8, @xo
v_bfe_u32 @lr.3, @l, 3, 1
v_lshlrev_b32 @lr.3, 31, @lr.3
v_mov_b32 @sq, 0
s_mul_i32 {xo}, {tt}, 28672
s_add_u32 {xo}, {xo}, {xr}'''.format(tt=sTT, t0=sT0, xr=XR, q=sQ, ones=ONES, mq=sMQ, ring=RING, try_=sTRY, xo=sXO))
        if R_ == 'L':
            s('''v_lshlrev_b32 @pt.8, 2, @pt.8
v_xor_b32 @pt.8, @pt.2, @pt.8
v_lshlrev_b32 @pt.8, 4, @pt.8
v_lshl_add_u32 @pt.9, @pt.3, 3, @pt.4
s_movk_i32 {t0}, 3584
v_mad_u32_u24 @DT.0, @pt.9, {t0}, @pt.8
v_add_u32 @DT.1, 13312, @DT.0'''.format(t0=sT0))
        else:
            s('''v_lshlrev_b32 @pt.8, 3, @pt.6
s_lshl_b32 {t0}, {c}, 8
s_sub_u32 {t0}, 8192, {t0}
v_lshl_add_u32 @lbo, @pt.3, 8, @pt.8
v_add_u32 @lbo, {t0}, @lbo
v_add_u32 @lbo2, 4096, @lbo
s_sub_u32 {t0}, {t0}, 256
v_lshl_add_u32 @spo, @pt.3, 13, @pt.8
v_add_u32 @spo, {t0}, @spo
s_lshl_b32 {t0}, {s}, 11
s_add_u32 {t0}, {t0}, {cs}
v_add_u32 @cso, {t0}, @xo'''.format(t0=sT0, c=sC, s=sS, cs=WS_CS))
        if dumps or stamps:
            s('''v_lshlrev_b32 @dbg, 2, @l
s_mul_i32 {d}, {c}, 7
s_add_u32 {d}, {d}, {s}
s_lshl_b32 {d}, {d}, 3
s_add_u32 {d}, {d}, {w}
s_lshl_b32 {d}, {d}, 16
s_add_u32 {d}, {d}, {b}'''.format(d=sDBG, c=sC, s=sS, w=sW, b=WS_DBG))
        s('s_waitcnt lgkmcnt(0)')
        s('s_or_b32 {t}, {t}, 1\ns_add_u32 {t}, {t}, {k}'.format(t=sT, k=TAGC))
        s.wait_tags(vmtag=lambda t: t in (('x', 0), ('c', 0)))
        s('s_barrier')
        for p in range(NCH + 1):
            if p in stamps: s('s_memtime s[%d:%d]' % (STAMPS[stamps.index(p)], STAMPS[stamps.index(p)] + 1))
            kd = p + 4
            su, dd = dma(kd) if (R_ == 'L' and p >= 2 and kd < NCH) else ([], [None] * 4)
            for u in range(4):
                if p >= 1: s(mfma(p - 1, u, R_))
                if u == 0:
                    for t in su: s(t)
                if p < NCH:
                    for t in wread(p, u): s(t)
                if dd[u]: s(dd[u], tag=('c', kd))
                for it in P.get(R_, p, u):
                    if isinstance(it, tuple): s(it[0], tag=it[1])
                    else: s(it)
            for (dp, name, n, sl) in dumps:
                if dp == p: dump(s, name, n, sl)
            if p < NCH:
                pubs = P.pub.get((R_, p), set())
                s.wait_tags(vmtag=lambda t: t in (('x', p + 1), ('c', p + 1)), dstag=lambda t: t in pubs)
                s('s_barrier')
        return s
    sL = role('L'); sL('s_branch TAIL')
    sS_ = role('S')

    t = sS_.fork(); t.ds = []; t.vm = []
    t('TAIL:')
    if 43 in stamps: t('s_memtime s[%d:%d]' % (STAMPS[stamps.index(43)], STAMPS[stamps.index(43)] + 1))
    t('''v_lshlrev_b32 @ex, 4, @l
s_lshl_b32 {t0}, {w}, 11
s_add_u32 {t0}, {t0}, {ring}
v_add_u32 @fo, {t0}, @ex
s_xor_b32 {t0}, {t0}, 4096
v_add_u32 @ex, {t0}, @ex
v_lshlrev_b32 @oo, 1, @t.0
s_nop 7
s_cmp_ge_u32 {q}, 2
s_cbranch_scc1 TK1'''.format(t0=sT0, w=sW, ring=RING, q=sQ))
    for kh in range(2):
        if kh: t('TK1:')
        o = 8 * (1 - kh)
        t.raw('ds_write_b128 @fo, @own.%d:%d' % (o, o + 3)); t.raw('ds_write_b128 @fo, @own.%d:%d offset:1024' % (o + 4, o + 7))
        for k in range(8): t('v_add_f32 @xv.%d, @xv.%d, @own.%d' % (k, k, 8 * kh + k))
        if not kh: t('s_branch TK2')
    t('TK2:')
    t('''v_min_u32 @fo, 6, @l
s_mul_i32 {t0}, {c}, 7
v_add_u32 @fo, {t0}, @fo
v_lshlrev_b32 @fo, 7, @fo
s_add_u32 {t0}, {t0}, {s}
s_lshl_b32 {t1}, {t0}, 7
s_add_u32 {t1}, {t1}, {fl}
v_mov_b32 @fv, {T}
s_mul_i32 {a}, {t0}, 49152
s_add_u32 {a}, {a}, {wp}
s_lshr_b32 {b}, {q}, 1
v_lshl_add_u32 @so, {b}, 10, @so
s_waitcnt vmcnt(0) lgkmcnt(0)
s_barrier
s_cmp_lg_u32 {w}, 0
s_cbranch_scc1 TNF
s_mov_b64 exec, 1
buffer_store_dword @fv, off, {ws}, {t1} sc1
s_mov_b64 exec, -1
TNF:
ds_read_b128 @Rr.0:3, @ex
ds_read_b128 @Rr.4:7, @ex offset:1024
s_mov_b32 {try_}, 0
s_movk_i32 {t1}, {fl}'''.format(t0=sT0, t1=sT1, c=sC, s=sS, fl=WS_FLAG, T=sT, a=sA, b=sB, wp=WS_P, q=sQ, w=sW, ws=R4(SWS), try_=sTRY))
    if 44 in stamps: t('s_memtime s[%d:%d]' % (STAMPS[stamps.index(44)], STAMPS[stamps.index(44)] + 1))
    for k in range(8): t('v_add_f32 @xv.%d, @xv.%d, @Rr.%d' % (k, k, k))
    t('''TPOLL:
buffer_load_dword @fv, @fo, {ws}, {t1} offen sc1
s_add_u32 {try_}, {try_}, 1
s_waitcnt vmcnt(0)
v_cmp_ne_u32 vcc, {T}, @fv
s_cmp_lt_u32 {try_}, {mx}
s_cbranch_scc0 TGO
s_cbranch_vccnz TPOLL
TGO:'''.format(ws=R4(SWS), t1=sT1, try_=sTRY, T=sT, mx=maxtry))
    if 45 in stamps: t('s_memtime s[%d:%d]' % (STAMPS[stamps.index(45)], STAMPS[stamps.index(45)] + 1))
    for d in range(6):
        t('buffer_load_dwordx4 @Pp.%d:%d, @so, %s, %s offen sc1' % (4 * d, 4 * d + 3, R4(SWS), sA))
        if d < 5: t('s_add_u32 %s, %s, 8192' % (sA, sA))
    t('''s_lshl_b32 {a}, {xo}, 1
s_cmp_lg_u32 {c}, 31
s_cselect_b32 {t0}, 1, {s}
s_or_b32 {t0}, {t0}, {w}
s_cmp_lg_u32 {t0}, 0
s_cbranch_scc1 TNE
s_mov_b64 exec, 1
buffer_store_dword @fv, off, {ws}, 0
s_mov_b64 exec, -1
TNE:'''.format(a=sA, xo=sXO, c=sC, t0=sT0, s=sS, w=sW, ws=R4(SWS)))
    t.vm = t.vm[:-1]
    for d in range(6):
        for j in range(4):
            t('v_dot2c_f32_bf16 @xv.%d, %s, @Pp.%d' % (2 * j, sLO, 4 * d + j))
            t('v_dot2c_f32_bf16 @xv.%d, %s, @Pp.%d' % (2 * j + 1, sHI, 4 * d + j))
    for k in range(8):
        t('buffer_store_dword @xv.%d, @oo, %s, %s offen offset:%d' % (k, R4(SOUT), sA, (k & 1) * 1792))
        if k & 1 and k < 7: t('s_add_u32 %s, %s, 3584' % (sA, sA))
    if stamps:
        t('s_waitcnt vmcnt(0)\ns_memtime s[4:5]\ns_memrealtime s[6:7]\ns_waitcnt lgkmcnt(0)')
        vals = ['s0', 's6', 's4'] + ['s%d' % STAMPS[i] for i in range(len(stamps))] + [sTRY]
        t('s_add_u32 %s, %s, %d' % (sDB2, sDBG, 65536 - 4096))
        for j, v in enumerate(vals):
            t('v_mov_b32 @fv, %s\nbuffer_store_dword @fv, @dbg, %s, %s offen offset:%d' % (v, R4(SWS), sDB2, j * 256))
    t('Lend:\ns_endpgm')

    h = Stream()
    h('HELP:')
    h('''s_add_u32 {s}, {t0}, {a}
s_cmp_eq_u32 {t0}, 3
s_cselect_b32 {s}, 3, {s}
s_cselect_b32 {t1}, {a}, 0
v_lshrrev_b32 @ho.0, 3, @l
v_lshl_add_u32 @ho.0, {w}, 3, @ho.0
v_and_b32 @ho.1, 7, @l
v_lshlrev_b32 @ho.1, 4, @ho.1
s_movk_i32 {t0}, 3584
v_mad_u32_u24 @ho.0, @ho.0, {t0}, @ho.1
s_lshl_b32 {c}, {s}, 2
s_add_u32 {c}, {c}, {b}
s_lshl_b32 {xo}, {c}, 7
v_lshl_add_u32 @ho.1, {w}, 6, @l
v_lshlrev_b32 @ho.2, 7, @ho.1
v_lshrrev_b32 @ho.3, 1, @ho.1
v_and_b32 @ho.4, 1, @ho.1
v_lshlrev_b32 @ho.4, 7, @ho.4
v_mad_u32_u24 @ho.3, @ho.3, {t0}, @ho.4
s_movk_i32 {t0}, 896
v_mul_u32_u24 @ho.4, {t0}, @ho.1
s_mov_b32 {lo}, 0x3f80
s_mov_b32 {hi}, 0x3f800000
s_waitcnt lgkmcnt(0)
s_load_dword {T}, {ws}, 0'''.format(s=sS, t0=sT0, t1=sT1, a=sA, b=sB, w=sW, c=sC, xo=sXO, lo=sLO, hi=sHI, T=sT, ws=PP('ws')))
    for d, n in ((SBRE, 'bre'), (SBIM, 'bim'), (SW1, 'w1'), (SW2, 'w2'), (SCRE, 'cre'), (SCIM, 'cim'), (SWS, 'ws')): srd(h, d, n)
    def touches(lst):
        for j, (sr, vo, ex) in enumerate(lst):
            h(ex)
            h.raw('buffer_load_dword @hp.%d, %s, %s, %s offen' % (j % 16, vo, R4(sr), sA))
            h.raw('s_waitcnt vmcnt(%d)' % (pf_depth - 1))
    mul = lambda k, add=0: 's_mul_i32 %s, %s, %d\ns_add_u32 %s, %s, %d' % (sA, sS, k, sA, sA, add)
    tB = [(SBRE, '@ho.2', mul(57344)), (SBIM, '@ho.2', mul(57344))]
    tW1 = [[(SW1, '@ho.3', mul(512, ab * 256 + j * 224 * 3584)) for j in range(2)] for ab in range(2)]
    tW2 = [(SW2, '@ho.2', mul(229376, j * 57344)) for j in range(4)]
    tC = [(SCRE, '@ho.4', mul(128)), (SCIM, '@ho.4', mul(128))]
    def colsum(lab):
        h('s_cmp_lg_u32 %s, 0\ns_cbranch_scc1 %s' % (sT1, lab))
        for g in range(7):
            h('s_add_u32 %s, %s, %d' % (sA, sXO, g * 229376))
            h('buffer_load_dwordx4 @hl.%d:%d, @ho.0, %s, %s offen' % (4 * g, 4 * g + 3, R4(SW1), sA))
        for j in range(8): h('v_mov_b32 @ha.%d, 0' % j)
        for g in range(7):
            for j in range(4):
                h('v_dot2c_f32_bf16 @ha.%d, %s, @hl.%d' % (2 * j, sLO, 4 * g + j))
                h('v_dot2c_f32_bf16 @ha.%d, %s, @hl.%d' % (2 * j + 1, sHI, 4 * g + j))
        for j in range(4): h('v_permlane32_swap_b32 @ha.%d, @ha.%d' % (j, j + 4))
        for j in range(4): h('v_add_f32 @ha.%d, @ha.%d, @ha.%d' % (j, j, j + 4))
        for j in range(2): h('v_permlane16_swap_b32 @ha.%d, @ha.%d' % (j, j + 2))
        for j in range(2): h('v_add_f32 @ha.%d, @ha.%d, @ha.%d' % (j, j, j + 2))
        for j in range(2): h('v_add_f32_dpp @ha.%d, @ha.%d, @ha.%d %s' % (j + 2, j, j, DPP))
        h('''v_and_b32 @ha.4, 7, @l
v_lshrrev_b32 @ha.5, 4, @l
v_lshlrev_b32 @ha.5, 3, @ha.5
v_lshl_add_u32 @ha.4, @ha.4, 5, @ha.5
v_lshl_add_u32 @ha.4, {w}, 8, @ha.4
ds_write_b64 @ha.4, @ha.2:3
v_lshlrev_b32 @ha.5, 2, @l
s_waitcnt lgkmcnt(0)
s_barrier
s_cmp_lg_u32 {w}, 0
s_cbranch_scc1 {lab}'''.format(w=sW, lab=lab))
        for j in range(8): h('ds_read_b32 @hl.%d, @ha.5 offset:%d' % (j, j * 256))
        h('s_or_b32 {t}, {t}, 1\ns_add_u32 {t}, {t}, {k}'.format(t=sT, k=TAGC))
        for a_, b_ in ((0, 1), (2, 3), (4, 5), (6, 7), (0, 2), (4, 6), (0, 4)): h('v_add_f32 @hl.%d, @hl.%d, @hl.%d' % (a_, a_, b_))
        h('''v_cvt_pk_bf16_f32 @hl.1, @hl.0, @hl.0
v_and_b32 @hl.1, 0xffff0000, @hl.1
v_sub_f32 @hl.0, @hl.0, @hl.1
v_cvt_pk_bf16_f32 @hl.0, @hl.1, @hl.0
v_mov_b32 @hl.1, {T}
v_lshlrev_b32 @ha.5, 3, @l
s_lshl_b32 {a}, {xo}, 2
s_add_u32 {a}, {a}, {cs}
buffer_store_dwordx2 @hl.0:1, @ha.5, {ws}, {a} offen sc1
{lab}:'''.format(T=sT, a=sA, xo=sXO, cs=WS_CS, ws=R4(SWS), lab=lab))
        h.vm = []; h.ds = []
    def tch(lst, lab):
        if not pf: return
        h('s_cmp_eq_u32 %s, 7\ns_cbranch_scc1 %s' % (sW, lab))
        touches(lst); h('%s:' % lab)
    tch(tB, 'HT0')
    h('s_cmp_ge_u32 %s, 2\ns_cbranch_scc1 HB' % sB)
    colsum('HC0')
    tch(tW1[0] + tW1[1], 'HT1')
    h('s_branch HJ\nHB:')
    tch(tW1[0], 'HT2')
    colsum('HC1')
    tch(tW1[1], 'HT3')
    h('HJ:')
    tch(tW2[:2] + tC + tW2[2:], 'HT4')
    h('s_waitcnt vmcnt(0)\ns_endpgm')

    ol = Stream()
    for b in tails: ol(b)

    errs = []
    e, own0 = check_owner(c0.out[:], {0: None}, 'c0'); errs += e
    for nm, st in (('L', sL), ('S', sS_)):
        e, own = check_owner(st.out, own0, nm); errs += e
        e, _ = check_owner(t.out, own, 'tail' + nm); errs += e
    e, _ = check_owner(h.out, own0, 'help'); errs += e
    for x in errs: print('OWNER', x)
    a = Asm()
    a(HEADER.rstrip())
    a('; @launch grid=(256,1,1) block=(512,1,1) lds=163840')
    a('.amdgcn_target "amdgcn-amd-amdhsa--gfx950"')
    kernel_begin(a, K)
    n0 = len(c0.out); info = {}
    seqs = []
    for nm, pre_, st in (('c0', [], c0.out), ('L', c0.out, sL.out), ('S', c0.out, sS_.out), ('t', sS_.out[-40:], t.out), ('h', c0.out[:12], h.out), ('ol', [], ol.out)):
        log = []
        fx, nn = fix_hazards(pre_ + st, log)
        k = 0; cntp = 0
        while cntp < len(pre_):
            if fx[k] is pre_[cntp]: cntp += 1
            k += 1
        seqs.append(fx[k:]); info[nm] = (len(fx) - k, nn)
    for sq in seqs:
        for i in sq: a(i.t)
    kernel_desc(a, K, vgpr=256, sgpr=102, accum=256)
    open(path, 'w').write(a.text())
    return dict(info=info, errs=len(errs))


if __name__ == '__main__':
    print(gen(sys.argv[1] if len(sys.argv) > 1 else 'g/k1.s'))
```

```python
import sys
from asmlib import *
def mk(src, dst, buf, off1, step, base=4000):
    L = open(src).read().split('\n')
    k = L.index(NAME + '_kernel:')
    pre = '''s_memrealtime s[100:101]
s_load_dwordx2 s[4:5], s[0:1], {ka}
v_lshrrev_b32 v1, 6, v0
s_nop 1
v_readfirstlane_b32 s6, v1
s_waitcnt lgkmcnt(0)
s_mov_b32 s101, 0
s_or_b32 s6, s6, s2
s_cmp_lg_u32 s6, 0
s_cbranch_scc1 PW
v_mov_b32 v1, {o1}
global_load_dword v3, v1, s[4:5]
s_waitcnt vmcnt(0)
s_memtime s[8:9]
s_waitcnt lgkmcnt(0)
'''.format(ka=KA[buf], o1=off1)
    for j in range(16): pre += 'v_add_u32 v1, %d, v1\nglobal_load_dword v3, v1, s[4:5]\ns_waitcnt vmcnt(0)\n' % step
    pre += '''s_memtime s[10:11]
s_waitcnt lgkmcnt(0)
s_sub_u32 s101, s10, s8
s_lshr_b32 s101, s101, 4
s_min_u32 s101, s101, 6000
PW:
s_memrealtime s[6:7]
s_waitcnt lgkmcnt(0)
s_sub_u32 s6, s6, s100
s_cmp_lt_u32 s6, 1500
s_cbranch_scc1 PW'''
    h = L.index('HEND:'); e = h + L[h:].index('s_endpgm')
    post = '''CAL:
s_memrealtime s[6:7]
s_waitcnt lgkmcnt(0)
s_sub_u32 s6, s6, s100
s_sub_u32 s6, s6, s101
s_cmp_lt_i32 s6, %d
s_cbranch_scc1 CAL''' % base
    L = L[:k + 1] + pre.split('\n') + L[k + 1:e] + post.split('\n') + L[e:]
    open(dst, 'w').write('\n'.join(L))
if __name__ == '__main__':
    mk('g/v2n.s', 'g/q_hit.s', 'x', 0x1000, 0)
    mk('g/v2n.s', 'g/q_x.s', 'x', 0x1000, 0x11100)
    mk('g/v2n.s', 'g/q_w.s', 'w2', 0x1000, 0x11100)
    mk('g/v2n.s', 'g/q_c.s', 'cre', 0x1000, 0x5100)
    mk('g/v2n.s', 'g/q_ws.s', 'ws', 0x200000, 0x11100)
    mk('g/v2n.s', 'g/q_wh.s', 'ws', 0xfe00000, 0x11100)
```

```python
import sys
from asmlib import *
def mk(src, dst, twice, sh, base=6000, n=512):
    L = open(src).read().split('\n')
    k = L.index(NAME + '_kernel:')
    pre = '''s_memrealtime s[100:101]
v_lshrrev_b32 v1, 6, v0
s_nop 1
v_readfirstlane_b32 s6, v1
s_waitcnt lgkmcnt(0)
s_mov_b32 s101, 0
s_or_b32 s6, s6, s2
s_cmp_lg_u32 s6, 0
s_cbranch_scc1 PW
s_mov_b32 s7, %d
PL:
s_memtime s[8:9]
s_waitcnt lgkmcnt(0)
''' % twice
    pre += 'v_mov_b32 v1, 0x12345678\n' * n
    pre += '''s_memtime s[10:11]
s_waitcnt lgkmcnt(0)
s_sub_u32 s7, s7, 1
s_cmp_ge_i32 s7, 0
s_cbranch_scc1 PL
s_sub_u32 s101, s10, s8
s_lshr_b32 s101, s101, %d
s_min_u32 s101, s101, 6000
PW:
s_memrealtime s[6:7]
s_waitcnt lgkmcnt(0)
s_sub_u32 s6, s6, s100
s_cmp_lt_u32 s6, 3500
s_cbranch_scc1 PW''' % sh
    h = L.index('HEND:'); e = h + L[h:].index('s_endpgm')
    post = '''CAL:
s_memrealtime s[6:7]
s_waitcnt lgkmcnt(0)
s_sub_u32 s6, s6, s100
s_sub_u32 s6, s6, s101
s_cmp_lt_i32 s6, %d
s_cbranch_scc1 CAL''' % base
    L = L[:k + 1] + pre.split('\n') + L[k + 1:e] + post.split('\n') + L[e:]
    open(dst, 'w').write('\n'.join(L))
if __name__ == '__main__':
    mk('g/v2n.s', 'g/i_warm.s', 1, 2)
    mk('g/v2n.s', 'g/i_cold.s', 0, 2)
```

```python
from asmlib import *
from emit import *
import emit, sys

RING = 8192; XR = 106496
GA = 0; FX = 1024
WS_CS = 32768; WS_SA = 65536; WS_S = 131072; WS_K = 393216; WS_P = 1 << 20; WS_L = 12 << 20; SLOT = 10240; WS_DBG = 32 << 20
TAGC = 0x3C6EF372
DPP = 'row_ror:8 row_mask:0xf bank_mask:0xf'

SX, SBRE, SBIM, SW1, SW2, SCRE, SCIM, SWS = 4, 8, 12, 16, 20, 24, 28, 32
STMP, SOUT, SOC = 72, 76, 80
def R4(b): return 's[%d:%d]' % (b, b + 3)
P_ = dict(lre=36, lim=38, ldt=40, dskip=42, b1=44, b2=46)
def PP(n): return 's[%d:%d]' % (P_[n], P_[n] + 1)
sW, sQ, sTT, sC, sS, sT, sMQ, sA, sB, sTRY, sT0, sT1 = ['s%d' % i for i in range(84, 96)]
HM = 's[96:97]'
sLO, sHI = 's98', 's99'
sXO = 's3'; sXM = 's70'; sT2 = 's71'
sO = ['s%d' % i for i in range(48, 54)]; sG = sO
sOW = 's54'; sOCr = ['s55', 's56', 's57']; sOCo = 's58'; sP = ['s59', 's60', 's61']
sW1b = 's62'; sBb = 's63'; sDBG = 's100'; sDB2 = 's101'
sKS, sKK, sCS, sST = 's72', 's73', 's74', 's75'
sSB, sNOM, sOO = 's36', 's37', 's38'
sM2 = 's[40:41]'
STAMPS = [64, 66, 68]
sLOC = 's39'; sTAB = 's44'; sXC = 's45'
WS_X = 16384

def targets(cfg, s):
    u = (s + 4) % 7 if cfg else s
    if u < 4: t = [(d + 2) % 4 if d == u else 4 + ((d - u) % 4) - 1 for d in range(4)] + [(u + 1) % 4, (u + 3) % 4]
    else: t = [(d + 3 + u - 4) % 4 for d in range(4)] + [4 + (u - 3) % 3, 4 + (u - 2) % 3]
    return [(x + 3) % 7 if cfg else x for x in t]
for cfg_ in range(2):
    for d_ in range(6): assert sorted(targets(cfg_, s_)[d_] for s_ in range(7)) == list(range(7))
    for s_ in range(7): assert sorted(targets(cfg_, s_) + [s_]) == list(range(7))

ORDER0 = ([('B', g) for g in range(7)] + [('W1', 0, g) for g in range(7)] + [('W1', 1, g) for g in range(7)]
          + [('W2', r, 0, 0) for r in range(3)] + [('W2', r, 0, 1) for r in range(3)]
          + [('C', r, p) for r in range(3) for p in range(2)]
          + [('W2', r, 1, 0) for r in range(3)] + [('W2', r, 1, 1) for r in range(3)]
          + [('OW', 0), ('OW', 1), ('OC',)])

PLAN0 = dict(lam=(1, 6), p1=(8, 9), spub=10, st_ld=8, st_ck=12, csa_ld=9, kxa=14, csb_ld=15, kxb=20, xq=7,
             tu=(11, 14), ga0=(15, 19, 0, 1), ga1=(19, 23, 2, 1), k_ld=20, p2=(24, 26, 0, 1), gb0=(26, 31, 2, 1), gb1=(31, 35, 2, 1),
             db_ld=28, xc_st=3, xc_ld=6, xc_ck=11, pre=(39, 41), gat=((41, 0), (42, 0), (42, 3)), npre=3, nx=3, ne=2, tB=1, tW=1, t2=None, dv=(0, 7, 0, 0), dsc=(0, 6))


def regs():
    R = Regs(); A = R.add
    A('l', 0)
    A('trA', 1); A('trB', 2); A('hrd', 3); A('hwr', 4)
    A('DT', 5, 2); A('DR', 7, 2)
    A('la', 9); A('lb', 10); A('l8', 11, 2); A('l16', 13, 2); A('dbg', 15)
    A('X', 16, 112); A('W', 128, 16)
    A('Aa', 144, 16); A('U', 160, 16); A('Ab', 176, 16)
    A('r0', 192, 16); A('r1', 80, 16); A('r2', 112, 16); A('own', 160, 16)
    A('xa', 208, 4); A('Bx', 208, 4); A('Ax', 212, 4); A('K', 216, 2); A('sp', 216, 2)
    A('hwa', 218); A('hr', 219, 2); A('so', 221); A('sa', 222); A('e', 223)
    A('M', 224, 2); A('cc', 226, 2); A('l32', 228, 2); A('xq', 230, 4); A('RA', 234, 4)
    A('g', 238, 4); A('Ea', 242); A('Z', 243); A('t', 244, 3); A('xo', 247); A('ra', 248, 8)
    A('pt', 144, 16)
    A('lr', 176, 16)
    A('xd', 192); A('sb', 193); A('co', 194); A('qa', 195, 2); A('xc', 198); A('xe', 199); A('tvA', 204); A('tchA', 205)
    A('sk', 208); A('gc', 222); A('ck', 212, 2); A('pcA', 238, 4); A('pcB', 244, 2)
    A('G', 48, 16); A('Ha0', 64, 16); A('hre', 16, 16); A('him', 32, 16)
    A('Ha1', 96, 16); A('Hb0', 144, 16); A('Hb1', 64, 16)
    A('O0', 16, 16); A('O1', 32, 16); A('O2', 48, 16)
    A('Dv', 11); A('b2', 12); A('oo', 13); A('gv', 14); A('fv', 209); A('ex', 210, 2); A('gt', 216)
    A('xv', 96, 8); A('Gt', 104, 8); A('Pp', 176, 16); A('Pq', 144, 8); A('Rr', 152, 8)
    A('hx', 16, 56); A('hl', 72, 4); A('hg', 72, 56); A('ha', 128, 12); A('ho', 140, 8); A('hp', 148, 8)
    A('LB', 16, 32); A('l64', 230, 2); A('KO', 48, 32)
    return R


class Plan:
    def __init__(s):
        s.f = {}
        s.pub = {}
    def put(s, roles, p, gap, items):
        for r in roles:
            s.f.setdefault((r, p, gap), []).append(list(items))
    def spread(s, roles, p0, p1, items, g0=0, g1=3):
        gaps = [(p, g) for p in range(p0, p1 + 1) for g in range(4)
                if not (p == p0 and g < g0) and not (p == p1 and g > g1)]
        c = [cost(it[0] if isinstance(it, tuple) else it) for it in items]
        tot = sum(c); acc = 0; per = [[] for _ in gaps]
        for it, ci in zip(items, c):
            k = min(len(gaps) - 1, int((acc + ci / 2) / tot * len(gaps)))
            per[k].append(it); acc += ci
        for (p, g), l in zip(gaps, per):
            if l: s.put(roles, p, g, l)
    def publish(s, roles, p, tag):
        for r in roles: s.pub.setdefault((r, p), set()).add(tag)
    def get(s, role, p, gap):
        qs = [list(q) for q in s.f.get((role, p, gap), [])]
        out = []
        while any(qs):
            for q in qs:
                if q: out.append(q.pop(0))
        return out


def cmul(dst, a, b, z, add, neg=False):
    return ['v_fma_f32 %s, %s, %s, %s' % (dst, a, z, add),
            'v_fmac_f32_dpp %s, %s, %s%s %s' % (dst, z, '-' if neg else '', b, DPP)]


def sizes(lines):
    import subprocess, re
    src = '\n'.join(re.sub(r'CODE_END-PCL-4|ROLEL-PCL', '0x12345', l) for l in lines) + '\n'
    r = subprocess.run(['llvm-mc', '-triple', 'amdgcn-amd-amdhsa', '-mcpu=gfx950', '-show-encoding'], input=src, capture_output=True, text=True)
    assert r.returncode == 0, r.stderr[:2000]
    enc = [len(m.split(',')) for m in re.findall(r'encoding: \[(.*?)\]', r.stdout)]
    out = []; k = 0
    for l in lines:
        if l.endswith(':'): out.append(0)
        else: out.append(enc[k]); k += 1
    assert k == len(enc)
    return out


def zip2(*ls):
    out = []
    for k in range(max(len(l) for l in ls)):
        for l in ls:
            if k < len(l): out.append(l[k])
    return out


def gen(path, order=ORDER0, plan=None, dumps=(), stamps=(), maxtry=1 << 18, outmod=' nt', local=True, hop=True, ctouch=True, ht2=True, htl=True):
    pl = dict(PLAN0); pl.update(plan or {})
    RG = regs(); emit.RESOLVE[0] = RG
    NCH = len(order); assert NCH == 42
    K = NAME + '_kernel'
    LS = 'LS'
    tails = []

    lam = '''v_bfe_u32 @lr.3, @l, 3, 1
v_lshlrev_b32 @lr.2, 16, @lr.2
v_lshlrev_b32 @lr.0, 16, @lr.0
v_lshlrev_b32 @lr.1, 16, @lr.1
v_mul_f32 @lr.2, 0x3fb8aa3b, @lr.2
v_lshlrev_b32 @lr.3, 31, @lr.3
v_exp_f32 @lr.2, @lr.2
v_mul_f32 @lr.6, @lr.0, @lr.0
v_fmac_f32 @lr.6, @lr.1, @lr.1
v_cvt_pk_bf16_f32 @lr.2, @lr.2, @lr.2
v_rcp_f32 @lr.6, @lr.6
v_lshlrev_b32 @lr.2, 16, @lr.2
v_mul_f32 @lr.4, @lr.2, @lr.0
v_mul_f32 @lr.5, @lr.2, @lr.1
v_mul_f32 @lr.4, 0x3fb8aa3b, @lr.4
v_mul_f32 @lr.5, 0.15915494309189532, @lr.5
v_exp_f32 @lr.4, @lr.4
v_fract_f32 @lr.5, @lr.5
v_cos_f32 @lr.7, @lr.5
v_sin_f32 @lr.8, @lr.5
v_add_f32 @lr.6, @lr.6, @lr.6
v_mul_f32 @la, @lr.7, @lr.4
v_mul_f32 @lr.8, @lr.8, @lr.4
v_add_f32 @lr.7, -1.0, @la
v_xor_b32 @lb, @lr.3, @lr.8
v_mul_f32 @lr.9, @lr.7, @lr.0
v_mul_f32 @lr.10, @lr.7, @lr.1
v_fmac_f32 @lr.9, @lr.8, @lr.1
v_fma_f32 @lr.10, -@lr.8, @lr.0, @lr.10
v_mul_f32 @lr.9, @lr.9, @lr.6
v_mul_f32 @cc.1, @lr.10, @lr.6
v_xor_b32 @cc.0, @lr.3, @lr.9'''.split('\n')
    def sq_(d, s_):
        da, db = d; sa, sb = s_
        return ['v_mul_f32 @lr.11, %s, %s' % (sb, sb), 'v_add_f32 @lr.12, %s, %s' % (sa, sa),
                'v_fma_f32 %s, %s, %s, -@lr.11' % (da, sa, sa), 'v_mul_f32 %s, @lr.12, %s' % (db, sb)]
    pw = lambda n: ('@%s.0' % n, '@%s.1' % n)
    lam += sq_(('@lr.4', '@lr.5'), ('@la', '@lb')) + sq_(('@lr.6', '@lr.7'), ('@lr.4', '@lr.5')) + sq_(pw('l8'), ('@lr.6', '@lr.7')) + sq_(pw('l16'), pw('l8'))
    lamadr = lambda q, s: '''v_and_b32 @lr.4, 7, @l
v_bfe_u32 @lr.5, @l, 4, 1
v_lshl_add_u32 @lr.4, @lr.5, 3, @lr.4
v_lshl_add_u32 @lr.4, {q}, 4, @lr.4
v_lshl_add_u32 @lr.4, {s}, 6, @lr.4
v_lshlrev_b32 @lr.4, 1, @lr.4'''.format(q=q, s=s)
    lamld = ['global_load_ushort @lr.%d, @lr.4, %s' % (j, PP(n)) for j, n in ((2, 'ldt'), (0, 'lre'), (1, 'lim'))]

    def slot(k): return k % 6
    def dma(k):
        c = order[k]; m0 = 's_add_u32 m0, %s, %d' % (sMQ, slot(k) * 16384)
        def four(srds, vs, ss):
            return ['buffer_load_dwordx4 %s, %s, %s offen offset:%d lds' % (vs[i], R4(srds[i]), ss[i], i * 1024) for i in range(4)]
        if c[0] == 'B':
            su = ['s_add_u32 %s, %s, %d' % (sA, sBb, c[1] * 128), 's_add_u32 %s, %s, %d' % (sB, sBb, c[1] * 128 + 5120)]
            d = four([SBRE, SBIM] * 2, ['@DR.0', '@DR.1'] * 2, [sA, sA, sB, sB])
        elif c[0] == 'W1':
            o = c[2] * 229376 + c[1] * 256
            su = ['s_add_u32 %s, %s, %d' % (sA, sW1b, o), 's_add_u32 %s, %s, %d' % (sB, sW1b, (o - 1920) & 0xffffffff)]
            d = four([SW1] * 4, ['@DT.0', '@DT.1'] * 2, [sA, sA, sB, sB])
        elif c[0] == 'W2':
            o = (128 * c[2] + 16 * c[3]) * 896
            su = ['s_add_u32 %s, %s, %d' % (sA, sO[2 * c[1]], o), 's_add_u32 %s, %s, %d' % (sB, sO[2 * c[1] + 1], o)]
            d = four([SW2] * 4, ['@DT.0', '@DT.1'] * 2, [sA, sA, sB, sB])
        elif c[0] == 'OW':
            o = 16 * c[1] * 896
            su = ['s_add_u32 %s, %s, %d' % (sA, sOW, o), 's_add_u32 %s, %s, %d' % (sB, sOW, o + 128 * 896 - 2048)]
            d = four([SW2] * 4, ['@DT.0', '@DT.1'] * 2, [sA, sA, sB, sB])
        else:
            base = sOCr[c[1]] if c[0] == 'C' else sOCo
            srd_ = (SCIM if c[2] else SCRE) if c[0] == 'C' else SOC
            su = ['s_add_u32 %s, %s, 12288' % (sB, base)]
            d = four([srd_] * 4, ['@DR.0', '@DR.1'] * 2, [base, base, sB, sB])
        return [m0] + su, d
    def wread(k, u):
        c = order[k]; sl = slot(k)
        if c[0] in ('B', 'C', 'OC'):
            return ['ds_read_b128 @W.%d:%d, @ra.%d offset:%d' % (4 * u, 4 * u + 3, u + (4 if sl >= 4 else 0), (sl % 4) * 16384)]
        a = '@trB' if sl >= 4 else '@trA'
        return ['ds_read_b64_tr_b16 @W.%d:%d, %s offset:%d' % (4 * u + 2 * rd, 4 * u + 2 * rd + 1, a, (sl % 4) * 16384 + u * 4096 + rd * 1024)
                for rd in range(2)]
    def actset(c):
        if c[0] == 'W2': return ['Ha0', 'Ha1', 'Hb0', 'Hb1'][2 * c[2] + c[3]]
        if c[0] == 'C': return ['hre', 'him'][c[2]]
        if c[0] == 'OW': return 'O%d' % c[1]
        if c[0] == 'OC': return 'O2'
    def accof(c):
        return {'B': 'U', 'W1': None, 'W2': None, 'C': None, 'OW': 'own', 'OC': 'own'}[c[0]] or \
            (('Aa', 'Ab')[c[1]] if c[0] == 'W1' else 'r%d' % c[1])
    started = {}
    def mfma(k, u, role):
        c = order[k]; acc = accof(c); w = '@W.%d:%d' % (4 * u, 4 * u + 3)
        first = (role, acc) not in started; started[(role, acc)] = 1
        cin = '0' if first else '@%s.0:15' % acc
        if c[0] == 'B': a, b = '@X.%d:%d' % (16 * c[1] + 4 * u, 16 * c[1] + 4 * u + 3), w
        elif c[0] == 'W1': a, b = w, '@X.%d:%d' % (16 * c[2] + 4 * u, 16 * c[2] + 4 * u + 3)
        else: a, b = '@%s.%d:%d' % (actset(c), 4 * u, 4 * u + 3), w
        return 'v_mfma_f32_32x32x16_bf16 @%s.0:15, %s, %s, %s' % (acc, a, b, cin)
    first_use = {}; last_r = {}
    for k, c in enumerate(order):
        if actset(c) and actset(c) not in first_use: first_use[actset(c)] = k
        if c[0] in ('W2', 'C'): last_r[c[1]] = k
    kW2 = min(k for k, c in enumerate(order) if c[0] in ('W2', 'OW'))
    kC = min(k for k, c in enumerate(order) if c[0] in ('C', 'OC'))
    kW1last = max(k for k, c in enumerate(order) if c[0] == 'W1'); kBlast = max(k for k, c in enumerate(order) if c[0] == 'B')
    assert kW2 > kW1last and kC > kBlast

    P = Plan()
    def rng(x): return (x[0], x[1]), dict(g0=x[2], g1=x[3]) if len(x) > 2 else {}
    def spread(roles, x, items):
        a_, k_ = rng(x); P.spread(roles, a_[0], a_[1], items, **k_)
    def retry(lab, loads, check, lane):
        tails.append('R%s:\ns_mov_b32 %s, 0\nR%sl:\n%s\ns_add_u32 %s, %s, 1\ns_waitcnt vmcnt(0)\ns_cmp_ge_u32 %s, %d\ns_cbranch_scc1 R%sx\n%s\ns_cbranch_scc1 R%sl\nR%sx:\n%ss_branch B%s'
                     % (lab, sTRY, lab, '\n'.join(loads), sTRY, sTRY, sTRY, maxtry, lab, check, lab, lab,
                        ('v_writelane_b32 v15, %s, %d\n' % (sTRY, lane)) if stamps else '', lab))
        return check + '\ns_cbranch_scc1 R%s\nB%s:' % (lab, lab)
    def both(p, gap, f):
        for r_ in LS: P.put(r_, p, gap, f(r_))
    ne = lambda reg: 'v_cmp_ne_u32 vcc, %s, %s\ns_cmp_lg_u64 vcc, 0' % (sT, reg)
    for g in range(7):
        for u in range(4):
            P.put(LS, g, u, ['ds_read_b128 @X.%d:%d, @xa.%d offset:%d' % (16 * g + 4 * u, 16 * g + 4 * u + 3, u, g * 1024)])
    assert 6 <= pl['xq'] <= 7
    P.put(LS, pl['xq'], 1, ['ds_read_b64_tr_b16 @xq.0:1, @qa.0', 'ds_read_b64_tr_b16 @xq.2:3, @qa.1 offset:7168'])
    assert pl['lam'][1] < pl['p1'][0]
    spread('L', pl['lam'], lam + ['v_cndmask_b32 @M.0, 1.0, @l16.0, %s' % HM, 'v_cndmask_b32 @M.1, 0, @l16.1, %s' % HM])
    spread('S', pl['lam'], lam + sq_(pw('l32'), pw('l16')) + [
        'v_mul_f32 @lr.4, @l16.0, @l32.0', 'v_mul_f32 @lr.5, @l16.0, @l32.1',
        'v_fma_f32 @lr.4, -@l16.1, @l32.1, @lr.4', 'v_fmac_f32 @lr.5, @l16.1, @l32.0',
        'v_cndmask_b32 @M.0, @l32.0, @lr.4, %s' % HM, 'v_cndmask_b32 @M.1, @l32.1, @lr.5, %s' % HM])
    def chain1(i0, pa, pb):
        out = []; prev = '@U.%d' % i0
        for j, i in enumerate(range(i0 + 1, i0 + 8)):
            d = (pa, pb)[j & 1]
            out += cmul(d, '@la', '@lb', prev, '@U.%d' % i, neg=True); prev = d
        return out, prev
    ca_, ea = chain1(0, '@g.0', '@g.1'); cb_, eb = chain1(8, '@g.2', '@g.3')
    p1 = []
    for j in range(7): p1 += [ca_[2 * j], cb_[2 * j], ca_[2 * j + 1], cb_[2 * j + 1]]
    p1 += ['v_fma_f32 @t.1, @l8.0, %s, %s' % (ea, eb),
           'v_mul_f32_dpp @t.2, %s, @cc.1 %s' % (ea, DPP),
           'v_fmac_f32_dpp @t.1, %s, -@l8.1 %s' % (ea, DPP),
           'v_fma_f32 @Ea, @cc.0, %s, @t.2' % ea,
           'v_mul_f32 @t.0, @cc.0, @t.1',
           'v_fmac_f32_dpp @t.0, @t.1, @cc.1 %s' % DPP,
           'v_mov_b32 @e, @t.0',
           'v_permlane32_swap_b32 @t.0, @e'] + cmul('@e', '@l16.0', '@l16.1', '@t.0', '@e')
    assert pl['p1'][0] > kBlast + 1
    spread('L', pl['p1'], p1 + [('ds_write_b32 @xo, @e offset:%d' % FX, 'FX'), 'v_cndmask_b32 @Z, 0, @t.0, %s' % HM])
    spread('S', pl['p1'], p1)
    sp = pl['spub']; assert sp > pl['p1'][1]
    P.publish('L', sp - 1, 'FX')
    P.put('S', sp, 0, ['ds_read_b32 @g.0, @xo offset:%d' % FX])
    P.put('S', sp, 1, cmul('@sp.0', '@l32.0', '@l32.1', '@g.0', '@e') + ['v_mov_b32 @sp.1, %s' % sT,
          'buffer_store_dwordx2 @sp.0:1, @co, %s, %s offen sc1' % (R4(SWS), sKS)] +
          cmul('@g.1', '@l16.0', '@l16.1', '@g.0', '@t.0') + ['v_cndmask_b32 @Z, @g.0, @g.1, %s' % HM])
    assert pl['st_ld'] >= 7 and pl['st_ck'] > max(sp, pl['st_ld'])
    stl = ['buffer_load_dwordx4 @RA.0:3, @sa, %s, %s offen sc1' % (R4(SWS), sST), 'buffer_load_dwordx4 @Bx.0:3, @sb, %s, %s offen sc1' % (R4(SWS), sSB)]
    P.put(LS, pl['st_ld'], 3, stl)
    stc = 'v_cmp_ne_u32 vcc, %s, @RA.3\nv_cmp_ne_u32 %s, %s, @Bx.3\ns_or_b32 s40, s40, vcc_lo' % (sT, sM2, sT)
    both(pl['st_ck'], 1, lambda r_: [retry('ST' + r_, stl, stc, 51), 'v_mul_f32 @e, @RA.0, @RA.0', 'v_lshrrev_b32 @sa, 2, @sa', 'v_mul_f32 @e, 0x3c0a3963, @e',
                                     ('ds_write_b32 @sa, @RA.2 offset:%d' % GA, 'G'), 'v_mov_b32 @Bx.3, 0', 'v_mul_f32 @RA.3, @e, @RA.0'])
    for ab, nm in enumerate('ab'):
        ld, kx = pl['cs%s_ld' % nm], pl['kx%s' % nm]
        assert ld < kx - 1 and kx > pl['st_ck'] and (ab == 0 or ld > pl['kxa'])
        ldi = ['buffer_load_dwordx4 @Ax.0:3, @co, %s, %s offen offset:%d sc1' % (R4(SWS), sCS, ab * 2048)]
        P.put(LS, ld, 3, ldi)
        both(kx - 1, 2, lambda r_: [retry('CS%d%s' % (ab, r_), ldi, ne('@Ax.3'), 56 + ab), 'v_mov_b32 @Ax.3, 0'])
        acc = '@A%s.0:15' % nm
        kk_ = [k for k, c in enumerate(order) if c[0] == 'W1' and c[1] == ab]
        assert kx > kk_[0] + 1
        P.put(LS, kx, 1, ['v_mfma_f32_32x32x16_bf16 %s, @Ax.0:3, @Bx.0:3, %s' % (acc, acc)])
        for e in range(2):
            x_ = pl['g%s%d' % (nm, e)]; p0, p1_ = x_[:2]
            assert p0 > kx and p0 > kk_[-1] + 1
            it = []
            for grp in range(2):
                el = ['@A%s.%d' % (nm, 8 * e + 4 * grp + j) for j in range(4)]; t = ['@g.%d' % j for j in range(4)]
                for f in ('v_mul_f32 {t}, {a}, {a}', 'v_fma_f32 {t}, {t}, @RA.3, @RA.0', 'v_mul_f32 {t}, {t}, {a}', 'v_exp_f32 {t}, {t}',
                          'v_fma_f32 {t}, {t}, @RA.1, @RA.1', 'v_rcp_f32 {t}, {t}', 'v_mul_f32 {t}, {t}, {a}'):
                    it += [f.format(t=t[j], a=el[j]) for j in range(4)]
                it += ['v_cvt_pk_bf16_f32 @A%s.%d, %s, %s' % (nm, 8 * e + 2 * grp + j, t[2 * j], t[2 * j + 1]) for j in range(2)]
            tag = 'H%s%d' % (nm, e)
            wr = ('ds_write_b128 @hwr, @A%s.%d:%d offset:%d' % (nm, 8 * e, 8 * e + 3, ab * 16384 + e * 4096), tag)
            wm = pl.get('wm', 0)
            if wm == 0: spread(LS, x_, it + [wr])
            elif wm == 1: spread(LS, x_, it)
            else:
                spread(LS, x_, it)
                for r_, dg in zip(LS, wm):
                    g_ = x_[1] * 4 + x_[3] + dg; P.put(r_, g_ >> 2, g_ & 3, ['s_nop 0', 's_nop 0', 's_nop 0', 's_nop 0', 's_nop 0', 's_nop 0', wr] if dg == 0 else [wr]); assert g_ >> 2 <= first_use[tag] - 1
            kf = first_use[tag]; assert p1_ <= kf - 1, (tag, p1_, kf)
            P.publish(LS, kf - 1, tag)
            for u in range(4):
                P.put(LS, kf, u, ['ds_read_b128 @%s.%d:%d, @hrd offset:%d' % (tag, 4 * u, 4 * u + 3, ab * 16384 + e * 4096 + u * 1024)])
    gel = sorted([pl['ga0'], pl['ga1'], pl['gb0'], pl['gb1']])
    for a_, b_ in zip(gel, gel[1:]): assert (a_[1], (a_[2:] or (0, 3))[1]) < (b_[0], (b_[2:] or (0, 3))[0])
    tu = []
    for i in range(0, 16, 2):
        tu += ['v_mul_f32_dpp @t.%d, @U.%d, @cc.1 %s' % (1 + j, i + j, DPP) for j in range(2)]
        tu += ['v_fma_f32 @U.%d, @cc.0, @U.%d, @t.%d' % (i + j, i + j, 1 + j) for j in range(2)]
    assert pl['tu'][0] > sp
    spread(LS, pl['tu'], tu)
    q0, q1 = pl['p2'][:2]; assert q0 > pl['tu'][1] and sp < pl['k_ld'] < q0 and q0 - 1 > 17
    kld = ['v_lshlrev_b32 @K.0, 1, @xo', 'buffer_load_dwordx2 @K.0:1, @K.0, %s, %s offen sc1' % (R4(SWS), sKK)]
    P.put(LS, pl['k_ld'], 3, kld)
    P.publish(LS, q0 - 2, 'G'); assert q0 - 2 >= pl['st_ck']
    P.put(LS, q0 - 1, 2, ['v_lshrrev_b32 @t.1, 5, @l', 'v_lshlrev_b32 @t.1, 6, @t.1', 'v_lshl_add_u32 @t.1, %s, 7, @t.1' % sTT])
    P.put(LS, q0 - 1, 3, ['ds_read_b128 @G.%d:%d, @t.1 offset:%d' % (4 * j, 4 * j + 3, GA + 16 * j) for j in range(4)])
    p2 = cmul('@t.0', '@M.0', '@M.1', '@K.0', '@Z') + cmul('@Z', '@l8.0', '@l8.1', '@t.0', '@Ea')
    for j in range(8):
        pa = '@t.0' if j == 0 else '@U.%d' % (j - 1); pb = '@Z' if j == 0 else '@U.%d' % (7 + j)
        a_ = cmul('@U.%d' % j, '@la', '@lb', pa, '@U.%d' % j); b_ = cmul('@U.%d' % (8 + j), '@la', '@lb', pb, '@U.%d' % (8 + j))
        p2 += [a_[0], b_[0], a_[1], b_[1]]
        if j in (4, 7):
            for jj in ((0, 2) if j == 4 else (1, 3)):
                p2 += ['v_mul_f32 @G.%d, @U.%d, @G.%d' % (i, i, i) for i in range(4 * jj, 4 * jj + 4)]
                p2 += ['v_cvt_pk_bf16_f32 @G.%d, @G.%d, @G.%d' % (4 * jj + m, 4 * jj + 2 * m, 4 * jj + 2 * m + 1) for m in range(2)]
                if jj: p2.append('v_xor_b32 @hwa, %d, @hwa' % (16 * {2: 2, 1: 3, 3: 2}[jj]))
                p2.append(('ds_write_b64 @hwa, @G.%d:%d' % (4 * jj, 4 * jj + 1), 'h'))
    for r_ in LS: spread(r_, pl['p2'], [retry('K' + r_, kld, ne('@K.1'), 58)] + p2)
    kh_ = min(first_use['hre'], first_use['him']); assert q1 <= kh_ - 1
    P.publish(LS, kh_ - 1, 'h')
    def hreads(nm, off):
        return [['ds_read_b64_tr_b16 @%s.%d:%d, @hr.%d offset:%d' % (nm, 4 * u + 2 * rd, 4 * u + 2 * rd + 1, rd, off + u * 1024) for rd in range(2)]
                for u in range(4)]
    for part, nm in enumerate(('hre', 'him')):
        for u, l_ in enumerate(hreads(nm, part * 4096)): P.put(LS, first_use[nm], u, l_)
    ko = min(first_use['O0'], first_use['O1'], first_use['O2'])
    assert ko - 1 > max(first_use[n] for n in ('Ha0', 'Ha1', 'Hb0', 'Hb1', 'hre', 'him'))
    P.put(LS, ko - 1, 0, ['s_lshr_b32 s2, %s, 1' % sQ, 'v_lshl_add_u32 @hrd, s2, 14, @hrd',
                          'v_lshl_add_u32 @hr.0, s2, 12, @hr.0', 'v_lshl_add_u32 @hr.1, s2, 12, @hr.1'])
    for e in range(2):
        for u in range(4):
            P.put(LS, first_use['O%d' % e], u, ['ds_read_b128 @O%d.%d:%d, @hrd offset:%d' % (e, 4 * u, 4 * u + 3, e * 4096 + u * 1024)])
    for u, l_ in enumerate(hreads('O2', 0)): P.put(LS, first_use['O2'], u, l_)
    if pl['t2'] is not None:
        assert pl['t2'] >= 7 - pl['nx']
        P.put('S', pl['t2'], 0, ['''s_cmp_eq_u32 {q}, 1
s_cselect_b32 s{o}, s{im}, s{re}
s_cselect_b32 s{o1}, s{im1}, s{re1}
s_mul_i32 s48, {c}, 12544
s_lshl_b32 s49, {s}, 7
s_add_u32 s48, s48, s49'''.format(q=sQ, c=sC, s=sS, o=SOC, o1=SOC + 1, im=SCIM, im1=SCIM + 1, re=SCRE, re1=SCRE + 1), '''s_lshl_b32 s49, {s}, 6
s_lshl_b32 s50, {c}, 1
s_add_u32 s49, s49, s50
s_add_u32 s49, s49, {q}
s_mul_i32 s49, s49, 3584
s_sub_u32 s49, s49, 5120'''.format(q=sQ, c=sC, s=sS), '''s_cmp_ge_u32 {q}, 2
s_cselect_b32 s{o}, s{w}, s{o}
s_cselect_b32 s{o1}, s{w1}, s{o1}
s_cselect_b32 s{o2}, s{w2}, s{o2}
s_cselect_b32 s48, s49, s48
s_cselect_b32 s49, 27, 13
s_cselect_b32 s50, 0x80, s95'''.format(q=sQ, o=SOC, o1=SOC + 1, o2=SOC + 2, w=SW2, w1=SW2 + 1, w2=SW2 + 2).replace('s_cselect_b32 s50, 0x80, s95', 's_movk_i32 s50, 896\ns_cselect_b32 s50, 0x80, s50'),
              'v_min_u32 @tvA, s49, @l', 'v_mul_u32_u24 @tvA, s50, @tvA', 'buffer_load_dword @tvA, @tvA, %s, s48 offen' % R4(SOC)])
    P.put('S', pl['xc_st'], 0, ['s_lshl_b32 {t}, {c}, 3\ns_add_u32 {t}, {t}, {s}\ns_lshl_b32 {t}, {t}, 2\ns_add_u32 {t}, {t}, {wx}\ns_cmp_eq_u32 {q}, 0\ns_cselect_b32 {t}, {t}, 0x40000000\nv_mov_b32 @xc, {xc}\n'
                      's_mov_b64 exec, 1\nbuffer_store_dword @xc, off, {ws}, {t} sc1\ns_mov_b64 exec, -1'.format(t='s41', c=sC, s=sS, q=sQ, wx=WS_X, xc=sXC, ws=R4(SWS))])
    xcl = ['v_min_u32 @xe, 6, @l', 'v_lshlrev_b32 @xe, 2, @xe',
           's_lshl_b32 {t}, {c}, 5\ns_add_u32 {t}, {t}, {wx}\nbuffer_load_dword @xc, @xe, {ws}, {t} offen sc1'.format(t='s41', c=sC, wx=WS_X, ws=R4(SWS))]
    P.put(LS, pl['xc_ld'], 3, xcl)
    xcm = ['s_lshr_b32 {t}, {q}, 1\ns_add_u32 {t}, {t}, 4\ns_lshl_b32 {t}, {t}, 2\ns_lshr_b32 {t}, {tab}, {t}\ns_and_b32 {t}, {t}, 7\nv_readlane_b32 {t}, @xc, {t}\n'
           's_cmp_eq_u32 {t}, {xc}\ns_cselect_b32 {loc}, {bit}, 0'.format(t=sT2, q=sQ, tab=sTAB, xc=sXC, bit=1 if local else 0, loc=sLOC)]
    assert pl['xc_ck'] > pl['dsc'][1]
    both(pl['xc_ck'], 2, lambda r_: [retry('XC' + r_, xcl, 'v_xor_b32 @xe, %s, @xc\nv_cmp_lt_u32 vcc, 15, @xe\ns_cmp_lg_u64 vcc, 0' % sT, 52)] + xcm)
    nsel = [0]
    def scoped(r, texts):
        dev = '\n'.join(x + ' sc1' for x in texts)
        if r < 2: return dev
        nsel[0] += 1; n = nsel[0]
        tails.append('SA%d:\n%s\ns_branch SB%d' % (n, dev, n))
        return 's_cmp_eq_u32 %s, 0\ns_cbranch_scc1 SA%d\n%s\nSB%d:' % (sLOC, n, '\n'.join(texts), n)
    cks = lambda d, x: ['v_xad_u32 %s, %s, %s, %s' % (d, x(0), sT, x(1)), 'v_add3_u32 %s, %s, %s, %s' % (d, d, x(2), x(3))]
    P.put(LS, min(last_r.values()) + 1, 2, ['v_lshrrev_b32 @sk, 2, @so', 'v_add_u32 @sk, 8192, @sk'])
    for r in range(3):
        it = ['v_cvt_pk_bf16_f32 @r%d.%d, @r%d.%d, @r%d.%d' % (r, j, r, 2 * j, r, 2 * j + 1) for j in range(8)]
        for r_ in LS:
            l_ = []
            for hf in range(2):
                l_ += it[4 * hf:4 * hf + 4] + cks('@ck.%d' % hf, lambda j: '@r%d.%d' % (r, 4 * hf + j))
                l_.append(scoped(r, ['buffer_store_dwordx4 @r%d.%d:%d, @so, %s, %s offen offset:%d' % (r, 4 * hf, 4 * hf + 3, R4(SWS), sP[r], hf * 1024),
                                     'buffer_store_dword @ck.%d, @sk, %s, %s offen offset:%d' % (hf, R4(SWS), sP[r], hf * 256)]))
            P.spread(r_, last_r[r] + 2, last_r[r] + 2, l_, g0=1, g1=2)
    P.put('L', kW2 - 5, 3, ['s_movk_i32 %s, 896' % sB, 'v_lshrrev_b32 @DT.1, 3, @l', 'v_and_b32 @DT.0, 0x70, @DT.0', 'v_mad_u32_u24 @DT.0, @DT.1, %s, @DT.0' % sB,
                            'v_add_u32 @DT.1, 6144, @DT.0'])
    P.put('L', kC - 5, 3, ['v_add_u32 @DR.1, 6144, @DR.1'])
    assert pl['db_ld'] > q1
    P.spread(LS, pl['db_ld'], pl['db_ld'], '''s_lshr_b32 {t0}, {q}, 1
s_and_b32 {t1}, {q}, 1
v_lshrrev_b32 @gt, 5, @l
v_and_b32 @Dv, 31, @l
v_lshl_add_u32 @gt, @gt, 1, {t0}
v_lshl_add_u32 @Dv, {t1}, 5, @Dv
v_lshl_add_u32 @gv, {t0}, 10, @so
v_lshl_add_u32 @Dv, {s}, 6, @Dv
s_movk_i32 {t1}, 7168
v_lshlrev_b32 @Dv, 1, @Dv
v_mad_u32_u24 @oo, @gt, {t1}, @Dv
v_lshlrev_b32 @gt, 5, @gt
v_lshlrev_b32 @oo, 1, @oo
v_lshl_add_u32 @gt, {tt}, 7, @gt'''.format(t0=sT0, t1=sT1, q=sQ, s=sS, tt=sTT).split('\n'), g1=2)
    P.put(LS, pl['db_ld'], 3, ['global_load_ushort @b2, @Dv, %s' % PP('b2'), 'global_load_ushort @Dv, @Dv, %s' % PP('dskip')])
    x0, x1 = pl['pre'][:2]; assert x0 - 1 > max(k for k, c in enumerate(order) if c[0] == 'W2' and c[2:] == (0, 1)) + 1
    P.put(LS, x0 - 1, 2, ['ds_read_b128 @Gt.%d:%d, @gt offset:%d' % (4 * j, 4 * j + 3, GA + 16 * j) for j in range(2)])
    it = ['v_lshlrev_b32 @b2, 16, @b2', 'v_lshlrev_b32 @Dv, 16, @Dv']
    it += [('v_and_b32 @xv.%d, 0xffff0000, @xq.%d' if k & 1 else 'v_lshlrev_b32 @xv.%d, 16, @xq.%d') % (k, k >> 1) for k in range(8)]
    it += ['v_fma_f32 @xv.%d, @xv.%d, @Dv, -@b2' % (k, k) for k in range(8)]
    it += ['v_fma_f32 @xv.%d, @xv.%d, @Gt.%d, @b2' % (k, k, k) for k in range(8)]
    it += ['s_lshl_b32 {t0}, {w}, 11\ns_add_u32 {t0}, {t0}, {ring}\nv_lshl_add_u32 @ex.0, @l, 4, {t0}'.format(t0=sT0, w=sW, ring=RING),
           'v_xor_b32 @ex.1, 4096, @ex.0']
    spread(LS, pl['pre'], it)
    kW2l = max(k for k, c in enumerate(order) if c[0] == 'W2')
    gs = ['s_mul_i32 {t}, {c}, 7\ns_add_u32 {t}, {t}, {s}\ns_mul_i32 {t}, {t}, {z}\ns_add_u32 {g}, {t}, {wp}'.format(t=sT2, c=sC, s=sS, g=sG[0], wp=WS_P, z=4 * SLOT)]
    gs += ['s_add_u32 %s, %s, %d' % (sG[d], sG[0], d * SLOT) for d in range(1, 4)]
    gs += ['s_mul_i32 {t}, {n}, {z}\ns_add_u32 {g}, {t}, {wl}\ns_add_u32 {g1}, {g}, {z1}'.format(t=sT2, n=sNOM, z=2 * SLOT, z1=SLOT, g=sG[4], g1=sG[5], wl=WS_L)]
    gp0 = max(kW2l - 3, pl['db_ld'] + 1)
    P.put(LS, gp0, 0, gs + ['v_lshrrev_b32 @gc, 2, @gv', 'v_add_u32 @gc, 8192, @gc'])
    def preg(d, j=None):
        nm, o = ('Pp', 4 * d) if d < 4 else ('Pq', 4 * d - 16)
        return '@%s.%d:%d' % (nm, o, o + 3) if j is None else '@%s.%d' % (nm, o + j)
    creg = lambda d: '@pcA.%d' % d if d < 4 else '@pcB.%d' % (d - 4)
    gld = lambda d: ['buffer_load_dwordx4 %s, @gv, %s, %s offen sc1' % (preg(d), R4(SWS), sG[d]), 'buffer_load_dword %s, @gc, %s, %s offen sc1' % (creg(d), R4(SWS), sG[d])]
    for r in range(3):
        gp, gg = pl['gat'][r]; assert gp > pl['gb1'][1] and gp > gp0
        if gp <= NCH: P.put(LS, gp, gg, gld(2 * r) + gld(2 * r + 1))

    def dump(s, name, n, sl):
        for j in range(n):
            if j % 16 == 0: s('s_add_u32 %s, %s, %d' % (sDB2, sDBG, sl * 256 + j * 256))
            s('buffer_store_dword @%s.%d, @dbg, %s, %s offen offset:%d' % (name, j, R4(SWS), sDB2, (j % 16) * 256))
    def srdc(d, n, bias=0):
        return 's_mov_b32 s%d, %d\ns_mov_b32 s%d, 0x20000' % (d + 2, SZ[n] + bias, d + 3)
    def srdb(d, bias):
        return 's_sub_u32 s%d, s%d, %d\ns_subb_u32 s%d, s%d, 0' % (d, d, bias, d + 1, d + 1)
    def stamp(s, p):
        if not stamps: return
        s('s_memtime s[%d:%d]' % (STAMPS[p % 3], STAMPS[p % 3] + 1))
        if p >= 2: s.raw('v_writelane_b32 v15, s%d, %d' % (STAMPS[(p - 2) % 3], p - 2))
    c0 = Stream()
    c0('s_cmp_ge_u32 s2, 256\ns_cbranch_scc1 Lend')
    for d, n in ((SX, 'x'), (SBRE, 'bre'), (SBIM, 'bim'), (SWS, 'ws')): c0('s_load_dwordx2 s[%d:%d], s[0:1], %d' % (d, d + 1, KA[n]))
    c0('s_load_dwordx4 s[36:39], s[0:1], 8\ns_load_dwordx4 s[40:43], s[0:1], 56')
    for d, n in ((SW1, 'w1'), (SW2, 'w2'), (SCRE, 'cre'), (SCIM, 'cim'), (SOUT, 'out'), (44, 'b1'), (46, 'b2'), (STMP, 'gw')):
        c0('s_load_dwordx2 s[%d:%d], s[0:1], %d' % (d, d + 1, KA[n]))
    if stamps: c0('s_memrealtime s[0:1]\ns_memtime s[100:101]'); c0.raw('v_mov_b32 v15, 0')
    c0.raw('v_lshrrev_b32 @pt.0, 6, v0')
    c0.raw('v_and_b32 @l, 63, v0')
    c0('''v_readfirstlane_b32 {w}, @pt.0
s_and_b32 {a}, s2, 1
s_lshl_b32 {a}, {a}, 2
s_bfe_u32 {b}, s2, 0x20001
s_lshr_b32 {t0}, s2, 3
{cx}
s_and_b32 {q}, {w}, 3
s_lshr_b32 {tt}, {w}, 2
s_cmp_ge_u32 {t0}, 4
s_cbranch_scc1 MAIN'''.format(w=sW, q=sQ, tt=sTT, a=sA, b=sB, t0=sT0, cx=srdc(SX, 'x')))
    m0_ = c0.fork()
    m0_('MAIN:\ns_sub_u32 {t0}, {t0}, 4\ns_lshl_b32 {b}, {b}, 3'.format(t0=sT0, b=sB))
    m0_('''s_sub_u32 {t1}, 16, {a}
s_sub_u32 {t1}, {t0}, {t1}
s_cselect_b32 {t0}, {t0}, {t1}
s_cselect_b32 {c}, 0, 4
s_cmp_eq_u32 {c}, {a}
s_cselect_b32 {t1}, 8, 11
s_cselect_b32 {s}, 4, 3
s_mul_i32 {t1}, {t0}, {t1}
s_add_u32 {c}, {c}, {b}
s_lshr_b32 {t1}, {t1}, 5
s_mul_i32 {s}, {s}, {t1}
s_add_u32 {c}, {c}, {t1}
s_sub_u32 {t0}, {t0}, {s}
s_add_u32 {s}, {t0}, {a}
s_cmp_eq_u32 {t0}, 3
s_cselect_b32 {s}, 3, {s}'''.format(c=sC, s=sS, a=sA, b=sB, t0=sT0, t1=sT1))
    m0_('''v_lshrrev_b32 @pt.0, 3, @l
v_lshrrev_b32 @pt.1, 4, @l
v_and_b32 @pt.2, 7, @l
v_lshrrev_b32 @pt.3, 5, @l
v_and_b32 @pt.4, 3, @pt.0
v_xor_b32 @pt.5, @pt.2, @pt.1
v_lshlrev_b32 @pt.5, 4, @pt.5
s_and_b32 {t0}, {q}, 1
s_lshl_b32 {t0}, {t0}, 6
s_movk_i32 {t1}, 896
v_lshl_add_u32 @pt.6, @pt.3, 4, @pt.4
v_xor_b32 @xd, {t0}, @pt.5
v_mad_u32_u24 @xd, @pt.6, {t1}, @xd
s_lshl_b32 {a}, {c}, 1
s_add_u32 {a}, {a}, {tt}
s_lshl_b32 {a}, {a}, 3
s_add_u32 {a}, {a}, {q}
s_mul_i32 {xo}, {a}, 3584
s_mul_i32 {xm}, {w}, 7168
s_add_u32 {xm}, {xm}, {xr}
s_lshl_b32 {mq}, {q}, 12
s_add_u32 {mq}, {mq}, {ring}
v_mad_u32_u24 @DR.0, @pt.0, {t1}, @pt.5
v_xor_b32 @DR.1, 64, @DR.0
s_lshl_b32 {a}, {s}, 2
s_add_u32 {a}, {a}, {q}
s_mul_i32 {bb}, {a}, 14336'''.format(w=sW, q=sQ, tt=sTT, c=sC, s=sS, a=sA, bb=sBb, t0=sT0, t1=sT1, xo=sXO, mq=sMQ, xm=sXM, xr=XR, ring=RING))
    m0_(srdc(SBRE, 'bre')); m0_(srdc(SBIM, 'bim', 1024))

    def xdma(s, g):
        s('s_add_u32 m0, %s, %d' % (sXM, g * 896))
        s('buffer_load_dwordx4 @xd, %s, %s offen offset:%d lds' % (R4(SX), sXO, g * 128), tag=('x', g))

    def setup(R_):
        F = dict(w=sW, q=sQ, tt=sTT, c=sC, s=sS, t0=sT0, t1=sT1, t2=sT2, t3=sTRY, xr=XR, mq=sMQ, ring=RING)
        v = '''v_and_b32 @pt.6, 31, @l
v_bfe_u32 @pt.7, @l, 1, 3
v_xor_b32 @pt.7, @pt.3, @pt.7
v_lshlrev_b32 @pt.7, 4, @pt.7
v_lshl_add_u32 @pt.8, {tt}, 2, @pt.4
s_movk_i32 {t0}, 7168
v_mad_u32_u24 @xa.0, @pt.8, {t0}, @pt.7
v_lshl_add_u32 @ra.0, @pt.6, 7, @pt.7
v_lshl_add_u32 @xa.0, @pt.2, 7, @xa.0
v_add_u32 @ra.0, {mq}, @ra.0
v_add_u32 @xa.0, {xr}, @xa.0
v_xor_b32 @ra.1, 32, @ra.0
v_xor_b32 @xa.1, 32, @xa.0
v_xor_b32 @ra.2, 64, @ra.0
v_xor_b32 @xa.2, 64, @xa.0
v_xor_b32 @ra.3, 0x60, @ra.0
v_xor_b32 @xa.3, 0x60, @xa.0
v_add_u32 @ra.4, 0x10000, @ra.0
v_add_u32 @ra.5, 0x10000, @ra.1
v_add_u32 @ra.6, 0x10000, @ra.2
v_add_u32 @ra.7, 0x10000, @ra.3
v_bfe_u32 @pt.8, @l, 2, 2
v_and_b32 @pt.10, 1, @pt.1
v_lshl_add_u32 @pt.9, @pt.3, 2, @pt.8
v_and_b32 @pt.11, 3, @l
v_lshlrev_b32 @trA, 7, @pt.9
v_lshrrev_b32 @pt.12, 1, @pt.8
s_and_b32 {t0}, {q}, 1
v_xor_b32 @pt.12, {t0}, @pt.12
v_lshrrev_b32 @pt.13, 1, @pt.9
v_bfe_u32 @pt.14, @l, 1, 1
v_lshl_add_u32 @pt.14, @pt.10, 1, @pt.14
s_lshl_b32 {t0}, {t0}, 2
v_xor_b32 @pt.13, @pt.13, @pt.14
v_and_b32 @pt.14, 1, @l
v_xor_b32 @pt.13, {t0}, @pt.13
v_lshl_add_u32 @qa.0, @pt.14, 3, @trA
s_and_b32 {t0}, {w}, 6
s_mul_i32 {t0}, {t0}, 7168
s_lshl_b32 {t1}, {s}, 10
s_add_u32 {t0}, {t0}, {t1}
s_add_u32 {t0}, {t0}, {xr}
v_lshl_add_u32 @qa.0, @pt.13, 4, @qa.0
v_lshl_add_u32 @trA, @pt.12, 6, @trA
v_add_u32 @qa.0, {t0}, @qa.0
v_lshl_add_u32 @trA, @pt.10, 5, @trA
v_xor_b32 @qa.1, 64, @qa.0
v_lshl_add_u32 @trA, @pt.11, 3, @trA
s_lshr_b32 {t0}, {q}, 1
s_lshl_b32 {t0}, {t0}, 11
s_add_u32 {t0}, {t0}, {ring}
v_add_u32 @trA, {t0}, @trA
s_lshl_b32 {t0}, {tt}, 13
s_add_u32 {t0}, {t0}, {xr}
v_add_u32 @trB, 0x10000, @trA
v_lshl_add_u32 @hrd, @l, 4, {t0}
v_lshlrev_b32 @xo, 3, @pt.6
v_lshl_add_u32 @hwr, {q}, 10, @hrd
v_lshl_add_u32 @xo, {q}, 8, @xo
v_bfe_u32 @pt.12, @l, 2, 1
v_lshlrev_b32 @co, 1, @xo
v_lshlrev_b32 @sa, 4, @pt.11
v_lshl_add_u32 @sa, @pt.12, 8, @sa
v_lshl_add_u32 @sa, @pt.4, 6, @sa
v_lshl_add_u32 @sa, {tt}, 9, @sa
v_lshl_add_u32 @hwa, @pt.10, 3, @pt.2
v_lshl_add_u32 @sb, @pt.3, 30, @sa
v_lshl_add_u32 @hwa, {q}, 4, @hwa
s_add_u32 {t0}, {t0}, 32768
v_bfe_u32 @pt.12, @hwa, 1, 3
v_and_b32 @pt.13, 1, @pt.0
v_xor_b32 @pt.12, @pt.3, @pt.12
v_lshl_add_u32 @hwa, @hwa, 6, {t0}
v_lshl_add_u32 @hwa, @pt.12, 3, @hwa
v_lshl_add_u32 @pt.12, @pt.3, 2, @pt.13
v_lshl_add_u32 @hwa, @pt.13, 12, @hwa
v_lshl_add_u32 @pt.13, @pt.10, 2, @pt.11
v_lshl_add_u32 @hr.0, @pt.3, 9, {t0}
v_xor_b32 @pt.12, @pt.12, @pt.13
v_lshl_add_u32 @hr.0, @pt.8, 6, @hr.0
s_and_b32 {t0}, {q}, 1
s_lshl_b32 {t1}, {tt}, 1
s_add_u32 {t0}, {t0}, {t1}
s_lshl_b32 {t0}, {t0}, 11
v_lshl_add_u32 @hr.0, @pt.12, 3, @hr.0
v_lshl_add_u32 @so, @l, 4, {t0}
v_xor_b32 @hr.1, 0x110, @hr.0'''.format(**F).split('\n')
        k0 = v.index('v_add_u32 @ra.4, 0x10000, @ra.0'); v0, v = v[:k0], v[k0:]
        if R_ == 'L':
            v = '''v_and_b32 @DT.1, 1, @pt.1
v_lshl_add_u32 @pt.15, @pt.3, 3, @pt.4
v_lshlrev_b32 @DT.1, 2, @DT.1
s_movk_i32 {t0}, 3584
v_xor_b32 @DT.1, @pt.2, @DT.1
v_lshlrev_b32 @DT.1, 4, @DT.1
v_mad_u32_u24 @DT.0, @pt.15, {t0}, @DT.1
v_add_u32 @DT.1, 13312, @DT.0'''.format(**F).split('\n') + v
        sc0 = ['s_and_b32 {n}, s2, 7\ns_mul_i32 {n}, {n}, 28\ns_lshr_b32 s2, s2, 3\ns_add_u32 {n}, {n}, s2\ns_sub_u32 {n}, {n}, 4'.format(n=sNOM),
               srdc(SWS, 'ws'), 's_getreg_b32 {xc}, hwreg(HW_REG_XCC_ID, 0, 4)\ns_andn2_b32 {t2}, {T}, 15\ns_or_b32 {xc}, {xc}, {t2}'.format(xc=sXC, T=sT, **F)]
        if R_ == 'L':
            sc0 = [srdb(SW1, 2048), srdc(SW1, 'w1', 2048), '''s_mul_i32 {w1b}, {q}, 57344
s_lshl_b32 {t2}, {s}, 9
s_add_u32 {w1b}, {w1b}, {t2}
s_add_u32 {w1b}, {w1b}, 2048'''.format(w1b=sW1b, **F)] + sc0
        sc = sc0 + srdc(SOUT, 'out').split('\n')
        sc += ('s_mov_b32 s96, 0\ns_mov_b32 s97, -1\ns_mov_b32 %s, 0x3f80\ns_mov_b32 %s, 0x3f800000' % (sLO, sHI)).split('\n')
        sc += '''s_lshl_b32 {t2}, {s}, 2
s_add_u32 {t2}, {t2}, {q}
s_lshl_b32 {t2}, {t2}, 4
s_lshr_b32 {ks}, {c}, 1
s_add_u32 {t2}, {t2}, {ks}
s_sub_u32 {t2}, {t2}, {q}
s_lshl_b32 {t2}, {t2}, 6
s_and_b32 {ks}, {c}, 1
s_add_u32 {t2}, {t2}, {ks}
s_lshl_b32 {t2}, {t2}, 3
s_add_u32 {ks}, {t2}, {wss}
s_add_u32 {kk}, {t2}, {wsk}
s_lshl_b32 {t2}, {s}, 12
s_add_u32 {cs}, {t2}, {wcs}
s_lshl_b32 {t2}, {c}, 10
s_add_u32 {st}, {t2}, {wsa}
s_add_u32 {sb}, {st}, 32768
s_lshl_b32 {t2}, {c}, 1
s_add_u32 {t2}, {t2}, {tt}
s_mul_i32 {oo}, {t2}, 57344'''.format(ks=sKS, kk=sKK, cs=sCS, st=sST, sb=sSB, oo=sOO, wss=WS_S, wsk=WS_K, wcs=WS_CS, wsa=WS_SA, **F).split('\n')
        tabc = lambda cfg, s_: sum(x << (4 * d) for d, x in enumerate(targets(cfg, s_)))
        sc += ['s_mov_b32 %s, %d' % (sTAB, tabc(0, 0)), 's_mov_b32 %s, %d' % (sT2, tabc(1, 0))]
        for s_ in range(1, 7):
            sc.append('s_cmp_eq_u32 %s, %d\ns_cselect_b32 %s, %d, %s\ns_cselect_b32 %s, %d, %s' % (sS, s_, sTAB, tabc(0, s_), sTAB, sT2, tabc(1, s_), sT2))
        sc.append('s_bitcmp1_b32 %s, 2\ns_cselect_b32 %s, %s, %s' % (sC, sTAB, sT2, sTAB))
        if R_ == 'L' or pl['t2'] is not None:
            sc = sc[:len(sc0)] + [srdb(SW2, 2048)] + '\n'.join([srdc(SW2, 'w2', 2048), srdc(SCRE, 'cre'), srdc(SCIM, 'cim'), srdc(SOC, 'cre')]).split('\n') + sc[len(sc0):]
        if R_ == 'L':
            sc += ['s_cmp_ge_u32 %s, 2\ns_cselect_b32 s%d, s%d, s%d\ns_cselect_b32 s%d, s%d, s%d' % (sQ, SOC, SCIM, SCRE, SOC + 1, SCIM + 1, SCRE + 1)]
            sc += '''s_lshl_b32 {t3}, {s}, 3
s_add_u32 {t3}, {t3}, {q}
s_mul_i32 {t3}, {t3}, 28672
s_lshl_b32 {t2}, {s}, 7
s_add_u32 {ow}, {t3}, {t2}
s_add_u32 {ow}, {ow}, 2048'''.format(ow=sOW, **F).split('\n')
            for d in range(6):
                sc += ['s_bfe_u32 {t2}, {tab}, {f}'.format(tab=sTAB, f=0x30000 + 4 * d, **F),
                       's_lshl_b32 {t2}, {t2}, 7'.format(**F), 's_add_u32 {o}, {t3}, {t2}'.format(o=sO[d], **F)]
                if not d & 1: sc.append('s_add_u32 %s, %s, 2048' % (sO[d], sO[d]))
            sc += 's_and_b32 {t3}, {q}, 1\ns_mul_i32 {t3}, {t3}, 28672\ns_lshl_b32 {t2}, {s}, 7\ns_add_u32 {t3}, {t3}, {t2}\ns_mul_i32 {t2}, {s}, 57344\ns_add_u32 {oo}, {t3}, {t2}'.format(oo=sOCo, **F).split('\n')
        for r in range(3):
            sc += ['s_lshr_b32 s2, {q}, 1'.format(**F), 's_add_u32 s2, s2, %d' % (2 * r),
                   's_lshl_b32 {t2}, s2, 2'.format(**F), 's_lshr_b32 {t2}, {tab}, {t2}'.format(tab=sTAB, **F), 's_and_b32 {t2}, {t2}, 7'.format(**F)]
            if R_ == 'L': sc += 's_mul_i32 {o}, {t2}, 57344\ns_add_u32 {o}, {o}, {t3}'.format(o=sOCr[r], **F).split('\n')
            if r < 2:
                sc += '''s_mul_i32 {p}, {c}, 7
s_add_u32 {t2}, {t2}, {p}
s_lshl_b32 {t2}, {t2}, 2
s_add_u32 {t2}, {t2}, s2
s_mul_i32 {t2}, {t2}, {z}
s_add_u32 {p}, {t2}, {wp}'''.format(p=sP[r], wp=WS_P, z=SLOT, **F).split('\n')
            else:
                sc += '''s_and_b32 {t2}, {t2}, 3
s_and_b32 {p}, {s}, 3
s_sub_u32 {p}, {n}, {p}
s_add_u32 {t2}, {t2}, {p}
s_lshl_b32 {t2}, {t2}, 1
s_add_u32 {t2}, {t2}, s2
s_mul_i32 {t2}, {t2}, {z}
s_add_u32 {p}, {t2}, {wl}'''.format(p=sP[r], n=sNOM, wl=WS_L - 4 * SLOT, z=SLOT, **F).split('\n')
        return v0, v, sc

    slots = {}
    npre, nx, ne0 = pl['npre'], pl['nx'], pl['ne']
    assert [c[0] for c in order[:5]] == ['B'] * 5 and 1 <= ne0 <= min(npre, nx)
    m0_('s_add_u32 m0, %s, 0' % sXM)
    m0_('s_waitcnt lgkmcnt(0)')
    if stamps: m0_.raw('v_writelane_b32 v15, s100, 60'); m0_('s_memtime s[100:101]')
    m0_('buffer_load_dwordx4 @xd, %s, %s offen lds' % (R4(SX), sXO), tag=('x', 0))
    m0_('s_load_dword %s, s[%d:%d], 0' % (sT, SWS, SWS + 1))
    m0_(srdb(SBIM, 1024))
    m0_('s_cmp_ge_u32 %s, 4\ns_cbranch_scc1 PS1' % sW)
    def cdma(s, k):
        a_, d = dma(k)
        for t in a_: s(t)
        for t in d: s(t, tag=('c', k))
    bL = m0_.fork(); bS = m0_.fork()
    for k in range(ne0):
        if k: xdma(bL, k)
        cdma(bL, k)
    bL('s_branch PJ')
    bS('PS1:')
    if pl['tB'] or pl['tW']:
        bS('''s_lshr_b32 {a}, {c}, 1
s_and_b32 {a}, {a}, 12
s_and_b32 {b}, {c}, 3
s_add_u32 {a}, {a}, {b}
s_bitcmp1_b32 {c}, 2
s_cbranch_scc1 PS3
s_cmp_ge_u32 {q}, 2
s_cbranch_scc1 {n2}'''.format(a=sA, b=sB, c=sC, q=sQ, n2='PS2' if pl['tW'] else 'PS3'))
        if pl['tB']:
            bS('''s_lshl_b32 {b}, {s}, 4
s_add_u32 {a}, {a}, {b}
s_mul_i32 {a}, {a}, 3584
s_lshl_b32 {b}, {q}, 10
s_add_u32 {a}, {a}, {b}
v_min_u32 @tvA, 27, @l
s_cmp_eq_u32 {q}, 1
s_cselect_b32 s40, s{i}, s{r}
s_cselect_b32 s41, s{i1}, s{r1}
v_lshl_add_u32 @tvA, @tvA, 7, {a}'''.format(a=sA, b=sB, s=sS, q=sQ, i=SBIM, i1=SBIM + 1, r=SBRE, r1=SBRE + 1).replace('s40', 's48').replace('s41', 's49'))
            bS.raw('global_load_dword @tvA, @tvA, s[48:49]')
        bS('s_branch PS3')
        if pl['tW']:
            bS('''PS2:
s_lshl_b32 {a}, {a}, 1
s_add_u32 {a}, {a}, {q}
s_sub_u32 {a}, {a}, 2
s_mul_i32 {a}, {a}, 50176
s_lshl_b32 {b}, {s}, 9
s_add_u32 {a}, {a}, {b}
v_min_u32 @tvA, 55, @l
v_and_b32 @tchA, 3, @l
v_lshrrev_b32 @tvA, 2, @tvA
s_movk_i32 {b}, 3584
v_lshl_add_u32 @tchA, @tchA, 7, {a}
v_mad_u32_u24 @tvA, @tvA, {b}, @tchA'''.format(a=sA, b=sB, s=sS, q=sQ))
            bS.raw('global_load_dword @tvA, @tvA, s[%d:%d]' % (SW1, SW1 + 1))
        bS('PS3:')
    for k in range(1, ne0): xdma(bS, k)
    sh = Stream()
    sh('PJ:')
    sh(lamadr(sQ, sS))
    for t_ in lamld: sh(t_)
    for t_ in setup('L')[0]: sh(t_)
    for r_ in LS:
        _, v_, sc_ = setup(r_); spread(r_, pl['dv'], v_); spread(r_, pl['dsc'], sc_)
    if dumps: sh('v_lshlrev_b32 @dbg, 2, @l')
    if stamps: sh('s_memtime s[64:65]\ns_waitcnt lgkmcnt(0)'); sh.raw('v_writelane_b32 v15, s100, 61'); sh.raw('v_writelane_b32 v15, s64, 62')
    if dumps or stamps:
        sh('''s_mul_i32 {d}, {c}, 7
s_add_u32 {d}, {d}, {s}
s_lshl_b32 {d}, {d}, 3
s_add_u32 {d}, {d}, {w}
s_lshl_b32 {d}, {d}, 16
s_add_u32 {d}, {d}, {b}'''.format(d=sDBG, c=sC, s=sS, w=sW, b=WS_DBG))
    sh('HOPS:')
    sh('s_cmp_ge_u32 %s, 4\ns_cbranch_scc1 ROLES\ns_branch ROLEL' % sW)
    def role(R_):
        s = Stream(); s.vm = list((bL if R_ == 'L' else bS).vm) + list(sh.vm)
        s('ROLE%s:' % R_)
        for k in range(ne0, max(npre, nx)):
            if k < nx: xdma(s, k)
            if k < npre and R_ == 'L': cdma(s, k)
        s.wait_tags(vmtag=lambda t: t in (('x', 0), ('c', 0)))
        s('s_waitcnt lgkmcnt(0)\ns_or_b32 {t}, {t}, 1\ns_add_u32 {t}, {t}, {k}'.format(t=sT, k=TAGC))
        s('s_barrier')
        for p in range(NCH + 1):
            stamp(s, p)
            n_before = len(s.out)
            ks = [k for k in (range(npre, 5) if p == 0 else [p + 4]) if k < NCH] if R_ == 'L' else []
            dq = []
            for k in ks:
                a_, d = dma(k); dq += [(a_ if j == 0 else [], d[j], k) for j in range(4)]
            gp = pl.get('dgap', {}).get(p, (0, 1, 2, 3))
            for u in range(4):
                if p >= 1: s(mfma(p - 1, u, R_))
                mine = [x for j, x in enumerate(dq) if gp[j * 4 // len(dq)] == u]
                if mine:
                    for t in mine[0][0]: s(t)
                if p < NCH:
                    for t in wread(p, u): s(t)
                for j, x in enumerate(mine):
                    if j:
                        for t in x[0]: s(t)
                    s(x[1], tag=('c', x[2]))
                if u == 3 and nx + p < 7: xdma(s, nx + p)
                for it in P.get(R_, p, u):
                    if isinstance(it, tuple): s(it[0], tag=it[1])
                    elif it.startswith('WAITVM'): s.wait_tags(vmtag=lambda t: t == it.split()[1])
                    else: s(it)
            slots.setdefault(p, {})[R_] = sum(cost(i.t) for i in s.out[n_before:])
            for (dp, name, n, sl) in dumps:
                if dp == p: dump(s, name, n, sl)
            if p < NCH:
                pubs = P.pub.get((R_, p), set())
                s.wait_tags(vmtag=lambda t: t in (('x', p + 1), ('c', p + 1)), dstag=lambda t: t in pubs)
                s('s_barrier')
        return s
    sL = role('L'); sL('s_branch TAIL')
    sS_ = role('S')

    t = sS_.fork(); t.ds = []
    def gq(q):
        j = min([k for k, o in enumerate(q) if o.cls == 'vld' and 'dwordx4' in o.op], default=len(q))
        return q[j:]
    t.vm = gq(sS_.vm)
    assert [o.t for o in t.vm] == [o.t for o in gq(sL.vm)], ([o.t for o in t.vm], [o.t for o in gq(sL.vm)])
    t('TAIL:')
    stamp(t, 43)
    for r in range(3):
        if pl['gat'][r][0] > NCH: t('\n'.join(gld(2 * r) + gld(2 * r + 1)))
    t('s_nop 7\ns_nop 3\ns_cmp_ge_u32 {q}, 2\ns_cbranch_scc1 TK1'.format(q=sQ))
    for kh in range(2):
        if kh: t('TK1:')
        o = 8 * (1 - kh)
        t.raw('ds_write_b128 @ex.0, @own.%d:%d' % (o, o + 3)); t.raw('ds_write_b128 @ex.0, @own.%d:%d offset:1024' % (o + 4, o + 7))
        for k in range(8): t('v_add_f32 @xv.%d, @xv.%d, @own.%d' % (k, k, 8 * kh + k))
        if not kh: t('s_branch TK2')
    t('TK2:')
    t('s_waitcnt lgkmcnt(0)\ns_barrier\nds_read_b128 @Rr.0:3, @ex.1\nds_read_b128 @Rr.4:7, @ex.1 offset:1024')
    stamp(t, 44)
    for d in range(6):
        ck = '\n'.join(cks('@e', lambda j: preg(d, j))) + '\nv_cmp_ne_u32 vcc, @e, %s\ns_cmp_lg_u64 vcc, 0' % creg(d)
        t(retry('G%d' % d, gld(d), ck, 50 if d < 4 else 63))
        for j in range(4):
            t('v_dot2c_f32_bf16 @xv.%d, %s, %s' % (2 * j, sLO, preg(d, j)))
            t('v_dot2c_f32_bf16 @xv.%d, %s, %s' % (2 * j + 1, sHI, preg(d, j)))
        if d == 1:
            for k in range(8): t('v_add_f32 @xv.%d, @xv.%d, @Rr.%d' % (k, k, k))
        if d == 3: stamp(t, 45)
    for k in range(8):
        t('buffer_store_dword @xv.%d, @oo, %s, %s offen offset:%d%s' % (k, R4(SOUT), sOO, (k & 1) * 1792, outmod))
        if k & 1 and k < 7: t('s_add_u32 %s, %s, 3584' % (sOO, sOO))
    t('''s_cmp_lg_u32 {c}, 31
s_cselect_b32 {t0}, 1, {s}
s_or_b32 {t0}, {t0}, {w}
s_cmp_lg_u32 {t0}, 0
s_cbranch_scc1 TNE
v_mov_b32 @fv, {T}
s_mov_b64 exec, 1
buffer_store_dword @fv, off, {ws}, 0
s_mov_b64 exec, -1
TNE:'''.format(c=sC, t0=sT0, s=sS, w=sW, ws=R4(SWS), T=sT))
    if stamps:
        stamp(t, 46)
        t('s_waitcnt vmcnt(0)\ns_memtime s[4:5]\ns_memrealtime s[6:7]\ns_waitcnt lgkmcnt(0)')
        for ln, v in ((45, 's%d' % STAMPS[0]), (46, 's%d' % STAMPS[1]), (47, 's4'), (48, 's0'), (49, 's6')): t.raw('v_writelane_b32 v15, %s, %d' % (v, ln))
        t('v_lshlrev_b32 @fv, 2, @l'); t.raw('buffer_store_dword v15, @fv, %s, %s offen' % (R4(SWS), sDBG))
    t('Lend:\ns_endpgm')

    sPP = sTT; sCB = sMQ; sSK = sXM
    def mkhst(h):
        def hst(ln):
            if stamps: h('s_memrealtime s[64:65]\ns_waitcnt lgkmcnt(0)'); h.raw('v_writelane_b32 v15, s64, %d' % ln)
        return hst
    h0 = c0.fork()
    h0('''s_lshl_b32 {c}, {b}, 3
s_add_u32 {c}, {c}, {a}
s_add_u32 {c}, {c}, {t0}
s_cmp_lt_u32 {w}, 4
s_cbranch_scc1 HELPX0'''.format(t0=sT0, a=sA, b=sB, w=sW, c=sC))
    if ctouch:
        h0('''v_lshl_add_u32 @hp.0, {q}, 6, @l
s_getpc_b64 s[64:65]
PCL:
v_lshlrev_b32 @hp.0, 7, @hp.0
v_mov_b32 @hp.1, 0
v_add_u32 @hp.0, ROLEL-PCL, @hp.0
v_min_u32 @hp.0, CODE_END-PCL-4, @hp.0
v_lshl_add_u64 @hp.0:1, @hp.0:1, 0, s[64:65]'''.format(q=sQ))
        h0.raw('global_load_dword @hp.2, @hp.0:1, off')
    h0('''s_branch HELPW
HELPX0:
v_and_b32 @ho.0, 15, @l
v_and_b32 @ho.1, 48, @l
v_lshl_add_u32 @ho.0, {q}, 4, @ho.0
s_movk_i32 {t0}, 896
v_mad_u32_u24 @ho.5, @ho.0, {t0}, @ho.1
v_lshlrev_b32 @ho.2, 4, @l
s_mul_i32 {xo}, {c}, 57344
s_lshl_b32 {t0}, {q}, 11
s_add_u32 m0, {t0}, 4096
{gw}
s_waitcnt lgkmcnt(0)'''.format(t0=sT0, a=sA, b=sB, w=sW, q=sQ, c=sC, xo=sXO, gw=srdc(STMP, 'gw')))
    mkhst(h0)(9)
    h0('buffer_load_dwordx4 @ho.2, %s, 0 offen lds' % R4(STMP), tag='gw')
    for g in range(14): h0('buffer_load_dwordx4 @hx.%d:%d, @ho.5, %s, %s offen offset:%d' % (4 * g, 4 * g + 3, R4(SX), sXO, g * 64))
    mkhst(h0)(10)
    h0('s_branch HELPX')
    hx = h0.fork(); hst = mkhst(hx)
    hx('HELPX:\ns_load_dword %s, s[%d:%d], 0' % (sT, SWS, SWS + 1))
    hst(1)
    hx(srdc(SWS, 'ws'))
    for j in range(4): hx('v_mov_b32 @ha.%d, 0x3f803f80' % j)
    hx('''v_add_u32 @ho.2, m0, @ho.2
v_and_b32 @ho.3, 1, @l
v_add_u32 @ho.1, m0, @ho.1
ds_write_b128 @ho.2, @ha.0:3 offset:1024
v_lshl_add_u32 @ho.1, @ho.3, 10, @ho.1
v_bfe_u32 @ho.3, @l, 2, 2
v_lshrrev_b32 @ho.4, 4, @l
v_lshlrev_b32 @ho.7, 4, @ho.0
v_xor_b32 @ho.3, @ho.3, @ho.4
v_lshl_add_u32 @ho.7, @ho.3, 28, @ho.7
s_mov_b32 s48, 0x22222222
s_mov_b32 s49, s48
s_lshl_b64 s[50:51], s[48:49], 1
s_lshl_b64 s[52:53], s[48:49], 2''')
    hx.wait_tags(vmtag=lambda t_: t_ == 'gw')
    hst(11)
    for g in range(14): hx('ds_read_b128 @hg.%d:%d, @ho.1 offset:%d' % (4 * g, 4 * g + 3, g * 64))
    for g in range(14):
        x_ = '@hx.%d:%d' % (4 * g, 4 * g + 3)
        hx('v_mfma_f32_16x16x32_bf16 @ha.4:7, %s, %s, %s' % (x_, x_, '@ha.4:7' if g else '0'))
        hx('v_mfma_f32_16x16x32_bf16 @ha.0:3, @hg.%d:%d, %s, %s' % (4 * g, 4 * g + 3, x_, '@ha.0:3' if g else '0'))
    hst(12)
    hx('''s_waitcnt lgkmcnt(0)
s_or_b32 {T}, {T}, 1
s_add_u32 {T}, {T}, {k}
v_cndmask_b32 @ha.9, @ha.4, @ha.5, s[48:49]
v_cndmask_b32 @ha.9, @ha.9, @ha.6, s[50:51]
v_cndmask_b32 @ha.9, @ha.9, @ha.7, s[52:53]
v_mul_f32 @ha.8, 0xbb124925, @ha.1
v_mul_f32 @ha.10, 0x3fb8aa3b, @ha.0
v_mul_f32 @ha.9, 0x3b124925, @ha.9
v_exp_f32 @ha.11, @ha.10
v_fma_f32 @ha.9, -@ha.8, @ha.8, @ha.9
v_exp_f32 @ha.10, -@ha.10
v_max_f32 @ha.9, 0, @ha.9
v_cvt_pk_bf16_f32 @hx.4, @ha.8, @ha.8
v_add_f32 @ha.9, 0x3727c5ac, @ha.9
v_add_f32 @ha.10, 1.0, @ha.10
v_rsq_f32 @hx.8, @ha.9
v_rcp_f32 @hx.2, @ha.10
v_and_b32 @hx.9, 0xffff0000, @hx.4
v_mov_b32 @hx.3, {T}
v_mul_f32 @ha.9, @ha.9, @hx.8
v_mul_f32 @hx.0, 0xc0135761, @hx.8
v_sub_f32 @ha.8, @ha.8, @hx.9
v_fma_f32 @hx.1, @ha.11, @ha.9, @ha.9
v_cvt_pk_bf16_f32 @hx.9, @ha.9, @ha.9
v_min_f32 @hx.1, 0x7149f2ca, @hx.1
v_and_b32 @hx.9, 0xffff0000, @hx.9
s_lshl_b32 {a}, {c}, 10
s_add_u32 {a}, {a}, {sa}
s_add_u32 {b}, {a}, 32768
buffer_store_dwordx4 @hx.0:3, @ho.7, {ws}, {a} offen sc1
v_cvt_pk_bf16_f32 @hx.6, @ha.8, @ha.8
v_sub_f32 @ha.9, @ha.9, @hx.9
v_mov_b32 @hx.7, {T}
v_cvt_pk_bf16_f32 @hx.5, @hx.9, @ha.9
buffer_store_dwordx4 @hx.4:7, @ho.7, {ws}, {b} offen sc1'''.format(T=sT, k=TAGC, a=sA, b=sB, c=sC, sa=WS_SA, ws=R4(SWS)))
    hst(2)
    hx('v_min_u32 @hp.0, 6, @l\nv_lshlrev_b32 @hp.0, 7, @hp.0')
    hx.raw('global_load_dword @hp.3, @hp.0, %s' % PP('dskip')); hx.raw('global_load_dword @hp.4, @hp.0, %s' % PP('b2'))
    if ht2:
        hx('''s_and_b32 {t0}, {c}, 3
s_and_b32 {a}, {c}, 4
s_add_u32 {s}, {t0}, {a}
s_cmp_eq_u32 {t0}, 3
s_cselect_b32 {s}, 3, {s}
s_cselect_b32 {t1}, {a}, 0
s_cmp_lg_u32 {t1}, 0
s_cbranch_scc1 HXE
s_lshr_b32 {b}, {c}, 3
s_lshl_b32 {a}, {s}, 2
s_add_u32 {a}, {a}, {b}
s_lshl_b32 {a}, {a}, 2
s_add_u32 {a}, {a}, {q}
s_mul_i32 {a}, {a}, 14336
v_min_u32 @hp.0, 55, @l
v_lshl_add_u32 @hp.1, @hp.0, 7, {a}
s_lshl_b32 {b}, {b}, 1
s_and_b32 {a}, {q}, 1
s_add_u32 {a}, {a}, {b}
s_mul_i32 {a}, {a}, 50176
s_lshl_b32 {b}, {s}, 7
s_add_u32 {a}, {a}, {b}
v_mov_b32 @hp.5, {a}
s_movk_i32 {b}, 896
v_mad_u32_u24 @hp.0, @hp.0, {b}, @hp.5
v_add_u32 @hp.5, 7168, @hp.1
s_cmp_ge_u32 {q}, 2
s_cselect_b32 s{r}, s{i}, s{r}
s_cselect_b32 s{r1}, s{i1}, s{r1}'''.format(t0=sT0, t1=sT1, a=sA, b=sB, c=sC, s=sS, q=sQ, r=SCRE, r1=SCRE + 1, i=SCIM, i1=SCIM + 1))
        for v_, p_ in (('@hp.1', SW2), ('@hp.5', SW2), ('@hp.0', SCRE)): hx.raw('global_load_dword %s, %s, s[%d:%d]' % (v_, v_, p_, p_ + 1))
        hx('HXE:')
    hx('s_branch HEND' if stamps else 's_endpgm')
    h = c0.fork(); hst = mkhst(h)
    h('''HELPW:
s_mov_b32 {pp}, {b}
s_add_u32 {s}, {t0}, {a}
s_xor_b32 {sk}, {a}, 4
s_cmp_eq_u32 {t0}, 3
s_cselect_b32 {s}, 3, {s}
s_cselect_b32 {t1}, {a}, 0
s_cselect_b32 {sk}, {sk}, 0
v_lshrrev_b32 @ho.0, 3, @l
v_and_b32 @ho.1, 7, @l
v_lshl_add_u32 @ho.0, {q}, 3, @ho.0
v_lshlrev_b32 @ho.6, 4, @ho.1
s_movk_i32 {t0}, 3584
v_mad_u32_u24 @ho.0, @ho.0, {t0}, @ho.6
s_lshl_b32 {cb}, {s}, 2
s_add_u32 {cb}, {cb}, {b}
s_lshl_b32 {xo}, {cb}, 7
s_lshl_b32 {b}, {cb}, 10
s_add_u32 {b}, {b}, {cs}
s_cmp_lg_u32 {t1}, 0
s_cselect_b32 {xo}, 0x40000000, {xo}
s_cselect_b32 {b}, 0x40000000, {b}
v_lshl_add_u32 @hp.3, {cb}, 6, @l
v_lshlrev_b32 @hp.3, 1, @hp.3
s_mov_b32 s96, 0
s_mov_b32 s97, -1
{la}'''.format(pp=sPP, s=sS, t0=sT0, t1=sT1, a=sA, b=sB, q=sQ, cb=sCB, sk=sSK, xo=sXO, cs=WS_CS, la=lamadr(sPP, sS)))
    hst(9)
    h(srdc(SW1, 'w1')); h(srdc(SWS, 'ws'))
    h('s_waitcnt lgkmcnt(0)\ns_load_dword %s, s[%d:%d], 0' % (sT, SWS, SWS + 1))
    for t_ in lamld: h(t_)
    h('global_load_ushort @hp.3, @hp.3, %s' % PP('b1'))
    hst(10)
    for g in range(14):
        h('buffer_load_dwordx4 @hx.%d:%d, @ho.0, %s, %s offen' % (4 * g, 4 * g + 3, R4(SW1), sXO))
        if g < 13: h('s_add_u32 %s, %s, 114688' % (sXO, sXO))
    hst(1)
    h('''v_and_b32 @ho.2, 1, @l
v_lshlrev_b32 @ho.2, 4, @ho.2
v_bfe_u32 @ho.3, @l, 1, 3
v_mov_b32 @ho.4, 0x3f80
v_lshlrev_b32 @ho.2, @ho.2, @ho.4''')
    for j in range(4): h('v_cmp_eq_u32 vcc, %d, @ho.3\nv_cndmask_b32 @ha.%d, 0, @ho.2, vcc' % (j, j))
    h('''v_bfe_u32 @ho.3, @l, 4, 1
v_lshrrev_b32 @ho.4, 5, @l
v_lshlrev_b32 @ho.1, 5, @ho.1
v_lshl_add_u32 @ho.1, @ho.3, 4, @ho.1
v_lshl_add_u32 @ho.1, @ho.4, 10, @ho.1
v_lshl_add_u32 @ho.1, {q}, 8, @ho.1
v_lshlrev_b32 @ho.5, 2, @l
v_lshlrev_b32 @ho.6, 4, @l'''.format(q=sQ))
    for g in range(14): h('v_mfma_f32_16x16x32_bf16 @ha.4:7, @ha.0:3, @hx.%d:%d, %s' % (4 * g, 4 * g + 3, '@ha.4:7' if g else '0'))
    hst(12)
    for j in range(4): h('v_add_f32_dpp @ha.%d, @ha.%d, @ha.%d %s' % (8 + j, 4 + j, 4 + j, DPP))
    h('''ds_write_b128 @ho.1, @ha.8:11
s_waitcnt lgkmcnt(0)
s_or_b32 {T}, {T}, 1
s_add_u32 {T}, {T}, {k}
s_barrier
s_cmp_lg_u32 {w}, 4
s_cbranch_scc1 HC'''.format(w=sW, T=sT, k=TAGC))
    for j in range(4): h('ds_read_b32 @hl.%d, @ho.5 offset:%d' % (j, j * 256))
    for a_, b_ in ((0, 1), (2, 3), (0, 2)): h('v_add_f32 @hl.%d, @hl.%d, @hl.%d' % (a_, a_, b_))
    h('''v_cvt_pk_bf16_f32 @hl.2, @hl.0, @hl.0
v_lshl_or_b32 @hl.1, @hp.3, 16, @hp.3
v_and_b32 @hl.2, 0xffff0000, @hl.2
v_mov_b32 @hl.3, {T}
v_sub_f32 @hl.0, @hl.0, @hl.2
v_cvt_pk_bf16_f32 @hl.0, @hl.2, @hl.0
v_mov_b32 @hl.2, @hl.0
buffer_store_dwordx4 @hl.0:3, @ho.6, {ws}, {b} offen sc1'''.format(T=sT, b=sB, ws=R4(SWS)))
    hst(3)
    h('HC:'); h.vm = []; h.ds = []
    h('s_cmp_lg_u32 %s, 7\ns_cselect_b32 %s, 1, %s' % (sW, sSK, sSK))
    h('s_cmp_lg_u32 %s, 0\ns_cbranch_scc1 HT' % sSK)
    h('''s_setprio 3
v_and_b32 @ho.2, 31, @l
v_lshrrev_b32 @ho.3, 5, @l
v_lshlrev_b32 @ho.2, 4, @ho.2
v_lshl_add_u32 @ho.2, @ho.3, 12, @ho.2
s_lshl_b32 {a}, {cb}, 13
s_add_u32 {b}, {a}, {wk}
s_add_u32 {a}, {a}, {ws}'''.format(a=sA, b=sB, cb=sCB, wk=WS_K, ws=WS_S))
    for t_ in lam + sq_(pw('l32'), pw('l16')) + sq_(pw('l64'), pw('l32')): h(t_)
    for i in range(16): h('v_mov_b32 @KO.%d, %s' % (2 * i + 1, sT))
    h('s_mov_b32 %s, 0\nHPOLL:' % sTRY)
    for i in range(8): h('buffer_load_dwordx4 @LB.%d:%d, @ho.2, %s, %s offen offset:%d sc1' % (4 * i, 4 * i + 3, R4(SWS), sA, i * 512))
    h('s_add_u32 %s, %s, 1' % (sTRY, sTRY))
    for i in range(0, 16, 2):
        if i == 0: h('v_max_u32 @ho.4, @LB.1, @LB.3\nv_min_u32 @ho.5, @LB.1, @LB.3')
        else: h('v_max3_u32 @ho.4, @ho.4, @LB.%d, @LB.%d\nv_min3_u32 @ho.5, @ho.5, @LB.%d, @LB.%d' % (2 * i + 1, 2 * i + 3, 2 * i + 1, 2 * i + 3))
    h('''v_cmp_ne_u32 vcc, {T}, @ho.4
v_cmp_ne_u32 s[40:41], {T}, @ho.5
s_cmp_ge_u32 {y}, {mx}
s_cbranch_scc1 HGO
s_or_b64 vcc, vcc, s[40:41]
s_cbranch_scc1 HPOLL
HGO:'''.format(T=sT, y=sTRY, mx=maxtry))
    hst(5)
    prev = '@LB.0'
    for i in range(1, 16):
        d_ = '@KO.%d' % (2 * (i & 1))
        for t_ in cmul(d_, '@l64.0', '@l64.1', prev, '@LB.%d' % (2 * i)): h(t_)
        prev = d_
    h('v_mov_b32 @KO.0, %s\nv_permlane32_swap_b32 %s, @KO.0\nv_cndmask_b32 @KO.0, 0, %s, %s' % (prev, prev, prev, HM))
    for i in range(16):
        if i & 1: h('buffer_store_dwordx4 @KO.%d:%d, @ho.2, %s, %s offen offset:%d sc1' % (2 * i - 2, 2 * i + 1, R4(SWS), sB, (i >> 1) * 512))
        if i < 15:
            for t_ in cmul('@KO.%d' % (2 * i + 2), '@l64.0', '@l64.1', '@KO.%d' % (2 * i), '@LB.%d' % (2 * i)): h(t_)
    hst(6)
    if stamps: h.raw('v_writelane_b32 v15, %s, 8' % sTRY)
    h('HT:')
    if htl:
        h('''s_barrier
s_and_b32 {a}, s2, 7
s_lshl_b32 {a}, {a}, 2
s_lshr_b32 {b}, s2, 3
s_add_u32 {a}, {a}, {b}
s_lshl_b32 {a}, {a}, 2
s_add_u32 {a}, {a}, {q}
s_mul_i32 {a}, {a}, 35840
s_add_u32 {a}, {a}, {wl}
v_min_u32 @hp.0, 55, @l
v_lshlrev_b32 @hp.0, 7, @hp.0'''.format(a=sA, b=sB, q=sQ, wl=WS_L))
        for j in range(5):
            h.raw('buffer_load_dword @hp.%d, @hp.0, %s, %s offen' % (3 + j, R4(SWS), sA))
            if j < 4: h('s_add_u32 %s, %s, 7168' % (sA, sA))
    h('HEND:')
    if stamps:
        hst(7); h.raw('v_writelane_b32 v15, s0, 0')
        h('s_add_u32 {d}, {c}, 224\ns_lshl_b32 {d}, {d}, 3\ns_add_u32 {d}, {d}, {w}\ns_lshl_b32 {d}, {d}, 16\ns_add_u32 {d}, {d}, {b}\nv_lshlrev_b32 @hp.0, 2, @l'.format(d=sDBG, c=sC, w=sW, b=WS_DBG))
        h.raw('buffer_store_dword v15, @hp.0, %s, %s offen' % (R4(SWS), sDBG))
    h('s_endpgm')

    ol = Stream()
    pri = lambda b: [b.startswith(x) for x in ('RG', 'RK', 'RST', 'RCS', 'RXC', 'SA')].index(True)
    for b in sorted(tails, key=pri): ol(b)

    errs = []
    e, own0 = check_owner(c0.out[:], {0: None}, 'c0'); errs += e
    e, own1 = check_owner(m0_.out, own0, 'm0'); errs += e
    for nm, b_, st in (('L', bL, sL), ('S', bS, sS_)):
        e, own = check_owner(b_.out + sh.out + st.out, own1, nm); errs += e
        e, _ = check_owner(t.out, own, 'tail' + nm); errs += e
    e, own = check_owner(h0.out + hx.out, own0, 'helpx'); errs += e
    e, own = check_owner(h.out, own0, 'help'); errs += e
    errs = [x for x in errs if 'v_and_b32 v0, 63, v0' not in x and 'v15' not in x]
    for x in errs: print('OWNER', x)
    info = {}
    def fixed(nm, pre_, st):
        fx, nn = fix_hazards(pre_ + st)
        k = 0; cntp = 0
        while cntp < len(pre_):
            if fx[k] is pre_[cntp]: cntp += 1
            k += 1
        info[nm] = len(fx) - k
        return [i.t for i in fx[k:]]
    nh = [k for k, i in enumerate(h0.out) if i.t == 's_branch HELPW'][0] + 1
    T_sh = fixed('sh', m0_.out + bL.out, sh.out); assert T_sh == fixed('sh', m0_.out + bS.out, sh.out)
    T0 = (fixed('c0', [], c0.out) + fixed('h0', c0.out, h0.out) + fixed('m0', c0.out, m0_.out) + fixed('bL', m0_.out, bL.out) + fixed('bS', m0_.out, bS.out))
    pages = [fixed('L', sh.out, sL.out), fixed('S', sh.out, sS_.out) + fixed('t', sS_.out[-40:], t.out) + fixed('ol', [], ol.out)]
    T_h = fixed('h', c0.out + h0.out[:nh], h.out) + fixed('hx', h0.out, hx.out)
    npad = 0; body = []
    for pg in pages:
        body.append('.p2align 12'); pos = 0; nxt = 0
        for txt, sz in zip(pg, sizes(pg)):
            if hop and pos >= nxt and sz:
                body += ['PAD%d:' % npad, 's_cbranch_execz HOPR']; npad += 1; pos += 4; nxt += 4096
            body.append(txt); pos += sz
        info['bytes%d' % len(info)] = pos
    hp_ = []
    if hop:
        assert npad <= 8
        hp_ = ['s_mov_b64 exec, 0']
        for j in range(npad): hp_ += ['s_cmp_eq_u32 %s, %d' % (sW, j), 's_cbranch_scc1 PAD%d' % j]
        hp_ += ['HOPR:', 's_mov_b64 exec, -1']
    k = T_sh.index('HOPS:'); T_sh = T_sh[:k] + hp_ + T_sh[k + 1:]
    info['pro'] = (sum(sizes(T0)), sum(sizes(T_sh))); info['help'] = sum(sizes(T_h))
    a = Asm()
    a(HEADER.rstrip())
    a('; @launch grid=(256,1,1) block=(512,1,1) lds=163840')
    a('.amdgcn_target "amdgcn-amd-amdhsa--gfx950"')
    kernel_begin(a, K)
    for x in T0 + T_sh + body + ['.p2align 12'] + T_h + ['CODE_END:']: a(x)
    kernel_desc(a, K, vgpr=256, sgpr=102, accum=256)
    open(path, 'w').write(a.text())
    return dict(info=info, errs=len(errs), slots=[(slots[p]['L'], slots[p]['S']) for p in range(NCH + 1)])


if __name__ == '__main__':
    print(gen(sys.argv[1] if len(sys.argv) > 1 else 'g/k1.s'))
```
